```python
import torch

def _softmax(x, axis=-1):
    return torch.softmax(x, dim=axis)
def _gelu(x):
    return torch.nn.functional.gelu(x, approximate="tanh")
def _silu(x):
    return torch.nn.functional.silu(x)
def _sigmoid(x):
    return torch.sigmoid(x)
def _layernorm(x, axis=-1, eps=1e-5):
    m = x.mean(dim=axis, keepdim=True)
    v = x.var(dim=axis, keepdim=True, unbiased=False)
    return (x - m) / torch.sqrt(v + eps)
def _scatter_add(tgt, idx, src, axis=0):
    return tgt.clone().index_add_(axis, idx, src)
def _segment_sum(src, seg, n):
    out = torch.zeros((n,) + src.shape[1:], dtype=src.dtype)
    return out.index_add_(0, seg, src)
def _pad(x, pw):
    flat = tuple(v for pair in reversed(pw) for v in pair)
    return torch.nn.functional.pad(x, flat)

kernel_name = 'standalone__mha_block_cached__decode'

def setup_inputs():

    _w = (lambda a: (lambda t: t.to(torch.bfloat16) if t.is_floating_point() else t)(torch.as_tensor(a)))
    B, Sq, D = 4, 1, 448
    H, Sk, Dh = 16, 8192, 256
    return {
        "x": _w((lambda *s: torch.randn(*s, dtype=torch.bfloat16) * 0.8)(B, Sq, D)),
        "k_cache": _w((lambda *s: torch.randn(*s, dtype=torch.bfloat16) * 0.8)(B, H, Sk, Dh)),
        "v_cache": _w((lambda *s: torch.randn(*s, dtype=torch.bfloat16) * 0.05)(B, H, Sk, Dh)),
        "wq": _w((lambda *s: torch.randn(*s, dtype=torch.bfloat16) * 0.8)(D, H * Dh) * (D ** -0.5)),
        "wo": _w((lambda *s: torch.randn(*s, dtype=torch.bfloat16) * 0.05)(H * Dh, D) * ((H * Dh) ** -0.5)),
    }

def reference(x, k_cache, v_cache, wq, wo):
    B, Sq, D = x.shape
    H, Dh = 16, 256
    q = (lambda x, *d: x.permute(*d))((x @ wq).reshape(B, Sq, H, Dh), 0, 2, 1, 3)
    scores = torch.einsum("bhqd,bhkd->bhqk", q, k_cache) * (Dh ** -0.5)
    p = _softmax(scores, axis=-1)
    o = torch.einsum("bhqk,bhkd->bhqd", p, v_cache)
    return (lambda x, *d: x.permute(*d))(o, 0, 2, 1, 3).reshape(B, Sq, H * Dh) @ wo
```

```python
import sys, argparse

KNAME = 'standalone__mha_block_cached__decode_kernel'

class Asm:
    def __init__(self):
        self.L = []
        self.vm = []
    def e(self, s):
        for ln in s.split('\n'):
            self.L.append('    ' + ln.strip())
    def label(self, s):
        self.L.append(s + ':')
    def c(self, s):
        self.L.append('    ; ' + s)
    def vmop(self, tag, s):
        if len(self.vm) >= 63:
            self.e('s_waitcnt vmcnt(62)')
            self.vm = self.vm[-62:]
        self.e(s)
        self.vm.append(tag)
    def vmwait(self, tag):
        if tag not in self.vm:
            return False
        i = self.vm.index(tag)
        n = len(self.vm) - 1 - i
        self.e(f's_waitcnt vmcnt({n})')
        self.vm = self.vm[i + 1:]
        return True
    def vmdrain(self):
        self.e('s_waitcnt vmcnt(0)')
        self.vm = []
    def text(self):
        return '\n'.join(self.L) + '\n'

S_W = 3
S_X, S_K, S_V, S_WQ, S_WO, S_OUT, S_DBG, S_WS = 4, 6, 8, 10, 12, 14, 16, 18
R_K, R_V, R_WQ, R_WO, R_X, R_WS, R_OUT = 20, 24, 28, 32, 36, 40, 44
S_H, S_B, S_SP, S_ROW = 48, 49, 50, 51
S_BASE, S_T, S_CNT, S_C = 52, 53, 54, 55
S_MT = 56
S_EX = 64
S_WG = 66
S_TS = 82
V_TID, V_LANE, V_OK, V_OV, V_OWQ, V_OWO = 0, 1, 2, 3, 4, 5
V_T0, V_LDS, V_MAX, V_L, V_SC, V_E, V_PB, V_T, V_T1, V_T2 = 6, 7, 8, 9, 10, 11, 12, 13, 14, 15
V_D0, V_D1 = 16, 20
V_MASK = 24
V_SEL = 28
V_BX = 36
V_XD = 44
V_BQ = 60
V_RING = 92
V_INIT = 124
V_QF = 220
V_Y = 124
V_FIN = 92
L_PART, L_BF, L_MAX, L_LSUM, L_FLAG, L_Y, L_SC = 0x0000, 0x1000, 0x1200, 0x1210, 0x1220, 0x1400, 0x4000
LDS_BYTES = 0xC000
WS_ML = 0x80000
WS_TS = 3 << 20

def vr(b, n=4):
    return f'v[{b}:{b+n-1}]'
def ar(b, n=4):
    return f'a[{b}:{b+n-1}]'
def sr(b, n=4):
    return f's[{b}:{b+n-1}]'

class Kernel:
    def __init__(self, PD=8, G=4, LAG=14, stamps=False, wflags='', kvflags='nt', ninit=3):
        self.PD, self.G, self.LAG, self.stamps = PD, G, LAG, stamps
        self.wflags, self.kvflags, self.ninit = wflags, kvflags, ninit
        self.a = Asm()
        self.nstamp = 0

    def stamp(self):
        if self.stamps and self.nstamp < 8:
            r = S_TS + 2 * self.nstamp
            self.a.e(f's_memrealtime s[{r}:{r+1}]')
            self.nstamp += 1

    def blockoff(self, t):
        if self.G == 2: return t * 8192
        if self.G == 4: return (t >> 1) * 16384 + (t & 1) * 2048
        if self.G == 8: return t * 2048
    def waveshift(self):
        return {2: 11, 4: 12, 8: 13}[self.G]

    def kvload(self, kind, slot, dst, extra, base=S_BASE, tag=None):
        a = self.a
        t, j = slot >> 1, slot & 1
        off = extra + self.blockoff(t) + 256 * j
        hi, imm = off & ~0xFFF, off & 0xFFF
        srd, vo = (R_K, V_OK) if kind == 'K' else (R_V, V_OV)
        if base is None:
            if hi:
                a.e(f's_mov_b32 s{S_T}, {hi}')
                so = f's{S_T}'
            else:
                so = '0'
        elif hi:
            a.e(f's_add_u32 s{S_T}, s{base}, {hi}')
            so = f's{S_T}'
        else:
            so = f's{base}'
        a.vmop(tag, f'buffer_load_dwordx4 {vr(dst)}, v{vo}, {sr(srd)}, {so} offen offset:{imm} {self.kvflags}')

    def prologue(self):
        a = self.a
        a.e(f's_cmp_ge_u32 s2, 256')
        a.e('s_cbranch_scc1 L_end')
        a.e(f's_load_dwordx16 s[4:19], s[0:1], 0')
        self.stamp()
        a.e(f'v_lshrrev_b32 v{V_T0}, 6, v{V_TID}')
        a.e(f'v_and_b32 v{V_LANE}, 63, v{V_TID}')
        a.e(f'v_readfirstlane_b32 s{S_W}, v{V_T0}')
        a.c('workgroup id -> head (two heads per XCD under round-robin placement), batch, split')
        a.e(f's_and_b32 s{S_H}, s2, 7')
        a.e(f's_lshl_b32 s{S_H}, s{S_H}, 1')
        a.e(f's_bfe_u32 s{S_T}, s2, 0x10003')
        a.e(f's_add_u32 s{S_H}, s{S_H}, s{S_T}')
        a.e(f's_bfe_u32 s{S_SP}, s2, 0x20004')
        a.e(f's_lshr_b32 s{S_B}, s2, 6')
        a.e(f's_lshl_b32 s{S_ROW}, s{S_B}, 6')
        a.e(f's_lshl_b32 s{S_T}, s{S_H}, 2')
        a.e(f's_add_u32 s{S_ROW}, s{S_ROW}, s{S_T}')
        a.e(f's_add_u32 s{S_ROW}, s{S_ROW}, s{S_SP}')
        a.e(f's_mov_b32 s{S_C}, 0x3db8aa3b')
        g, m, c, kk = V_T, V_T1, V_T2, V_E
        a.e(f'v_lshrrev_b32 v{g}, 4, v{V_LANE}')
        a.e(f'v_and_b32 v{m}, 15, v{V_LANE}')
        a.e(f'v_and_b32 v{c}, 3, v{V_LANE}')
        a.e(f'v_bfe_u32 v{kk}, v{V_LANE}, 2, 2')
        a.e(f'v_lshlrev_b32 v{V_OK}, 9, v{kk}')
        a.e(f'v_lshl_add_u32 v{V_OK}, v{g}, 6, v{V_OK}')
        a.e(f'v_lshl_add_u32 v{V_OK}, v{c}, 4, v{V_OK}')
        a.e(f'v_lshlrev_b32 v{V_OV}, 9, v{g}')
        a.e(f'v_lshl_add_u32 v{V_OV}, v{m}, 4, v{V_OV}')
        a.e(f's_lshl_b32 s{S_T}, s{S_W}, {self.waveshift()}')
        a.e(f'v_add_u32 v{V_OK}, s{S_T}, v{V_OK}')
        a.e(f'v_add_u32 v{V_OV}, s{S_T}, v{V_OV}')
        a.e(f's_mul_i32 s{S_T}, s{S_W}, {112*8192}')
        a.e(f'v_mul_u32_u24 v{V_OWQ}, {28*8192}, v{g}')
        a.e(f'v_lshl_add_u32 v{V_OWQ}, v{m}, 4, v{V_OWQ}')
        a.e(f'v_add_u32 v{V_OWQ}, s{S_T}, v{V_OWQ}')
        a.e(f's_mul_i32 s{S_T}, s{S_W}, {64*896}')
        a.e(f'v_mul_u32_u24 v{V_OWO}, {16*896}, v{g}')
        a.e(f'v_lshl_add_u32 v{V_OWO}, v{m}, 4, v{V_OWO}')
        a.e(f'v_add_u32 v{V_OWO}, s{S_T}, v{V_OWO}')
        a.e(f's_mul_i32 s{S_T}, s{S_W}, 224')
        a.e(f's_mul_i32 s{S_CNT}, s{S_B}, 896')
        a.e(f's_add_u32 s{S_T}, s{S_T}, s{S_CNT}')
        a.e(f'v_mul_u32_u24 v{V_T0}, 56, v{g}')
        a.e(f'v_add_u32 v{V_T0}, s{S_T}, v{V_T0}')
        a.e('s_waitcnt lgkmcnt(0)')
        a.e(f's_lshl_b32 s{S_T}, s{S_B}, 4')
        a.e(f's_add_u32 s{S_T}, s{S_T}, s{S_H}')
        a.e(f's_lshl_b32 s{S_T}, s{S_T}, 2')
        a.e(f's_add_u32 s{S_T}, s{S_T}, s{S_SP}')
        a.e(f's_lshl_b32 s{S_CNT}, s{S_T}, 20')
        for (p, r) in ((S_K, R_K), (S_V, R_V)):
            a.e(f's_add_u32 s{r}, s{p}, s{S_CNT}')
            a.e(f's_addc_u32 s{r+1}, s{p+1}, 0')
            a.e(f's_mov_b32 s{r+2}, 0x100000')
            a.e(f's_mov_b32 s{r+3}, 0x20000')
        a.e(f's_mov_b32 s{R_X}, s{S_X}')
        a.e(f's_mov_b32 s{R_X+1}, s{S_X+1}')
        a.e(f's_mov_b32 s{R_X+2}, 3584')
        a.e(f's_mov_b32 s{R_X+3}, 0x20000')
        a.e(f's_lshl_b32 s{S_T}, s{S_H}, 9')
        a.e(f's_add_u32 s{R_WQ}, s{S_WQ}, s{S_T}')
        a.e(f's_addc_u32 s{R_WQ+1}, s{S_WQ+1}, 0')
        a.e(f's_sub_u32 s{R_WQ+2}, {448*8192}, s{S_T}')
        a.e(f's_mov_b32 s{R_WQ+3}, 0x20000')
        a.e(f's_mul_i32 s{S_T}, s{S_H}, {256*896}')
        a.e(f's_add_u32 s{R_WO}, s{S_WO}, s{S_T}')
        a.e(f's_addc_u32 s{R_WO+1}, s{S_WO+1}, 0')
        a.e(f's_mov_b32 s{R_WO+2}, {256*896}')
        a.e(f's_mov_b32 s{R_WO+3}, 0x20000')
        for i, (n, nm) in enumerate(((4, 'x4'), (4, 'x4'), (4, 'x4'), (2, 'x2'))):
            a.vmop(('x', i), f'buffer_load_dword{nm} {vr(V_XD+4*i, n)}, v{V_T0}, {sr(R_X)}, 0 offen offset:{16*i}')
        a.e(f's_mov_b32 s{R_WS}, s{S_WS}')
        a.e(f's_mov_b32 s{R_WS+1}, s{S_WS+1}')
        a.e(f's_mov_b32 s{R_WS+2}, 0x400000')
        a.e(f's_mov_b32 s{R_WS+3}, 0x20000')
        a.e(f's_mov_b32 s{R_OUT}, s{S_OUT}')
        a.e(f's_mov_b32 s{R_OUT+1}, s{S_OUT+1}')
        a.e(f's_mov_b32 s{R_OUT+2}, 3584')
        a.e(f's_mov_b32 s{R_OUT+3}, 0x20000')

        ninit = self.ninit
        kinit = [('ring', s) for s in range(8)] + [(('init', gi), s) for gi in range(ninit) for s in range(8)]
        kq = list(kinit)
        def k_issue(n):
            for _ in range(n):
                if not kq: return
                grp, s = kq.pop(0)
                if grp == 'ring':
                    self.kvload('K', s, V_RING + 4 * s, ninit * 32768, base=None, tag=('ring', s))
                else:
                    gi = grp[1]
                    self.kvload('K', s, V_INIT + 32 * gi + 4 * s, gi * 32768, base=None, tag=('init', gi, s))
        def wq_issue(u):
            a.e(f's_mov_b32 s{S_T}, {u*8192}')
            for j in range(2):
                a.vmop(('wq', u, j), f'buffer_load_dwordx4 {ar(8*u+4*j)}, v{V_OWQ}, {sr(R_WQ)}, s{S_T} offen offset:{256*j} {self.wflags}')
        def wo_issue(z):
            u, cb = z >> 2, z & 3
            a.e(f's_mov_b32 s{S_T}, {u*896}')
            a.vmop(('wo', z), f'buffer_load_dwordx4 {ar(4*z)}, v{V_OWO}, {sr(R_WO)}, s{S_T} offen offset:{224*cb} {self.wflags}')
        def consume(u):
            if u == 0:
                a.vmwait(('x', 3))
            st = V_BX + 4 * (u & 1)
            xd = V_XD + (u >> 1)
            for jj in range(4):
                a.e(f'v_perm_b32 v{st+jj}, v{xd}, v{xd}, v{V_SEL + 2*jj + (u & 1)}')
            a.vmwait(('wq', u, 1))
            a.e('s_nop 1')
            for j in range(2):
                d = V_D0 if j == 0 else V_D1
                cacc = '0' if u == 0 else vr(d)
                a.e(f'v_mfma_f32_16x16x32_bf16 {vr(d)}, {ar(8*u+4*j)}, {vr(st)}, {cacc}')
            wo_issue(2 * u); wo_issue(2 * u + 1)

        first = True
        for u in range(28):
            wq_issue(u)
            if u & 1: k_issue(1)
            if u == 3:
                self.lane_consts()
            if u >= self.LAG:
                consume(u - self.LAG)
                if u & 1: k_issue(1)
        for u in range(28 - self.LAG, 28):
            consume(u)
            k_issue(1)
        for z in range(56, 64):
            wo_issue(z)
        k_issue(64)
        self.stamp()
        n8 = V_T1
        a.e(f'v_lshrrev_b32 v{V_T}, 4, v{V_LANE}')
        a.e(f'v_lshlrev_b32 v{V_T}, 7, v{V_T}')
        a.e(f'v_lshl_add_u32 v{V_T}, v{V_T1}, 2, v{V_T}')
        a.e(f's_lshl_b32 s{S_T}, s{S_W}, 10')
        a.e(f'v_add_u32 v{V_QF}, s{S_T}, v{V_T}')
        a.e(f's_mov_b32 exec_lo, 0x00ff00ff\ns_mov_b32 exec_hi, 0x00ff00ff')
        a.e('s_nop 7')
        for j in range(2):
            for r in range(4):
                d = (V_D0 if j == 0 else V_D1) + r
                a.e(f'ds_write_b32 v{V_QF}, v{d} offset:{L_PART + j*512 + r*32}')
        a.e('s_mov_b64 exec, -1')
        a.e('s_waitcnt lgkmcnt(0)\ns_barrier')
        a.e(f'v_lshlrev_b32 v{V_T}, 2, v{V_TID}')
        for w in range(4):
            a.e(f'ds_read_b32 v{V_QF+w}, v{V_T} offset:{L_PART + w*1024}')
        a.e(f'v_lshlrev_b32 v{V_T2}, 1, v{V_TID}')
        a.e('s_waitcnt lgkmcnt(0)')
        a.e(f'v_add_f32 v{V_QF}, v{V_QF}, v{V_QF+1}')
        a.e(f'v_add_f32 v{V_QF+2}, v{V_QF+2}, v{V_QF+3}')
        a.e(f'v_add_f32 v{V_QF}, v{V_QF}, v{V_QF+2}')
        a.e(f'v_cvt_pk_bf16_f32 v{V_QF}, v{V_QF}, v{V_QF}')
        a.e(f'ds_write_b16 v{V_T2}, v{V_QF} offset:{L_BF}')
        a.e(f'v_lshrrev_b32 v{V_T}, 4, v{V_LANE}')
        a.e(f'v_lshlrev_b32 v{V_T}, 6, v{V_T}')
        a.e(f'v_and_b32 v{V_T2}, 3, v{V_LANE}')
        a.e(f'v_lshl_add_u32 v{V_T}, v{V_T2}, 4, v{V_T}')
        a.e('s_waitcnt lgkmcnt(0)\ns_barrier')
        for j in range(2):
            a.e(f'ds_read_b128 {vr(V_QF+4*j)}, v{V_T} offset:{L_BF + 256*j}')
        for t in range(4):
            mk = 0x000F000F << (4 * t)
            a.e(f's_mov_b32 s{S_MT+2*t}, {mk:#x}\ns_mov_b32 s{S_MT+2*t+1}, {mk:#x}')
        a.e(f's_lshl_b32 s{S_T}, s{S_W}, 13')
        a.e(f's_add_u32 s{S_T}, s{S_T}, {L_SC}')
        a.e(f'v_lshlrev_b32 v{V_LDS}, 2, v{V_LANE}')
        a.e(f'v_add_u32 v{V_LDS}, s{S_T}, v{V_LDS}')
        a.e(f'v_mov_b32 v{V_MAX}, 0xff800000')
        a.e('s_waitcnt lgkmcnt(0)')
        for t in range(4):
            for j in range(2):
                for r in range(4):
                    a.e(f'v_cndmask_b32 v{V_BQ + 4*(2*t+j) + r}, 0, v{V_QF+4*j+r}, s[{S_MT+2*t}:{S_MT+2*t+1}]')
        a.e('s_nop 1')
        self.stamp()

    def lane_consts(self):
        a = self.a
        n = V_T1
        a.e(f'v_and_b32 v{V_T2}, 1, v{n}')
        a.e(f'v_cmp_eq_u32 vcc, 1, v{V_T2}')
        a.e(f'v_mov_b32 v{V_E}, 0x0c0c0100\nv_mov_b32 v{V_PB}, 0x01000c0c')
        a.e(f'v_cndmask_b32 v{V_E}, v{V_E}, v{V_PB}, vcc')
        a.e(f'v_mov_b32 v{V_PB}, 0x0c0c0302\nv_mov_b32 v{V_SC}, 0x03020c0c')
        a.e(f'v_cndmask_b32 v{V_PB}, v{V_PB}, v{V_SC}, vcc')
        a.e(f'v_mov_b32 v{V_SC}, 0x0000ffff\nv_mov_b32 v{V_L}, 0xffff0000')
        a.e(f'v_cndmask_b32 v{V_SC}, v{V_SC}, v{V_L}, vcc')
        a.e(f'v_lshrrev_b32 v{V_T2}, 1, v{n}')
        a.e(f'v_mov_b32 v{V_L}, 0x0c0c0c0c')
        for jj in range(4):
            a.e(f'v_cmp_eq_u32 vcc, {jj}, v{V_T2}')
            a.e('s_nop 1')
            a.e(f'v_cndmask_b32 v{V_SEL+2*jj}, v{V_L}, v{V_E}, vcc')
            a.e(f'v_cndmask_b32 v{V_SEL+2*jj+1}, v{V_L}, v{V_PB}, vcc')
            a.e(f'v_cndmask_b32 v{V_MASK+jj}, 0, v{V_SC}, vcc')
        a.e(f'v_mov_b32 v{V_L}, 0')

    def score_finish(self, off):
        a = self.a
        a.e('s_nop 7')
        dpp = 'row_mask:0xf bank_mask:0xf'
        a.e(f'v_mov_b32_dpp v{V_T}, v{V_D0} quad_perm:[0,0,0,0] {dpp}')
        a.e(f'v_mov_b32_dpp v{V_T1}, v{V_D0+2} quad_perm:[2,2,2,2] {dpp}')
        a.e('s_nop 0')
        a.e(f'v_add_f32_dpp v{V_T}, v{V_D0+1}, v{V_T} quad_perm:[1,1,1,1] {dpp}')
        a.e(f'v_add_f32_dpp v{V_T1}, v{V_D0+3}, v{V_T1} quad_perm:[3,3,3,3] {dpp}')
        a.e(f'v_add_f32 v{V_T}, v{V_T}, v{V_T1}')
        a.e(f'ds_write_b32 v{V_LDS}, v{V_T} offset:{off}')
        a.e(f'v_max_f32 v{V_MAX}, v{V_MAX}, v{V_T}')

    def k_group(self, src, nxt, scoff, first_ring=False):
        a = self.a
        PD = self.PD
        for s in range(8):
            a.vmwait(src['tag'](s))
            cacc = '0' if s == 0 else vr(V_D0)
            a.e(f'v_mfma_f32_16x16x32_bf16 {vr(V_D0)}, {vr(src["reg"] + 4*s)}, {vr(V_BQ + 4*s)}, {cacc}')
            if nxt is None: continue
            n = s + PD
            if n < 8:
                if not first_ring:
                    self.kvload('K', n, V_RING + 4*n, 0, tag=('ring', n))
            else:
                if nxt == 'K':
                    self.kvload('K', n - 8, V_RING + 4*(n-8), 32768, tag=('ring', n - 8))
                else:
                    self.kvload('V', n - 8, V_RING + 4*(n-8), 0, base=None, tag=('ring', n - 8))
        self.score_finish(scoff)

    def k_phase(self):
        a = self.a
        ninit = self.ninit
        ring = {'reg': V_RING, 'tag': lambda s: ('ring', s)}
        a.e(f's_mov_b32 s{S_BASE}, {ninit*32768}')
        a.e(f'v_mov_b32 v{V_PB}, v{V_LDS}')
        self.k_group(ring, 'K', ninit * 256, first_ring=True)
        a.e(f's_add_u32 s{S_BASE}, s{S_BASE}, 32768')
        for gi in range(ninit):
            self.k_group({'reg': V_INIT + 32*gi, 'tag': (lambda s, gi=gi: ('init', gi, s))}, None, gi * 256)
        a.e(f'v_add_u32 v{V_LDS}, {(ninit+1)*256}, v{V_LDS}')
        a.e(f's_mov_b32 s{S_CNT}, {30 - ninit}')
        entry = list(a.vm)
        keep = [t for t in entry if t[0] == 'ring']
        if keep != entry:
            last = [t for t in entry if t[0] != 'ring'][-1]
            a.vmwait(last)
        entry = list(a.vm)
        a.label('L_kloop')
        self.k_group(ring, 'K', 0)
        assert a.vm == entry, (a.vm, entry)
        a.e(f'v_add_u32 v{V_LDS}, 256, v{V_LDS}')
        a.e(f's_add_u32 s{S_BASE}, s{S_BASE}, 32768')
        a.e(f's_sub_u32 s{S_CNT}, s{S_CNT}, 1')
        a.e(f's_cmp_lg_u32 s{S_CNT}, 0')
        a.e('s_cbranch_scc1 L_kloop')
        self.k_group(ring, 'V', 0)
        a.e(f'v_mov_b32 v{V_LDS}, v{V_PB}')
        self.stamp()

    def midpoint(self):
        a = self.a
        v = V_MAX
        for ctl in ('row_ror:4 row_mask:0xf', 'row_ror:8 row_mask:0xf', 'row_bcast:15 row_mask:0xa', 'row_bcast:31 row_mask:0xc'):
            a.e('s_nop 1')
            a.e(f'v_max_f32_dpp v{v}, v{v}, v{v} {ctl} bank_mask:0xf')
        a.e(f's_lshl_b32 s{S_T}, s{S_W}, 2')
        a.e(f'v_mov_b32 v{V_T}, s{S_T}')
        a.e('s_mov_b32 exec_lo, 0\ns_mov_b32 exec_hi, 0x80000000')
        a.e(f'ds_write_b32 v{V_T}, v{v} offset:{L_MAX}')
        a.e('s_mov_b64 exec, -1')
        a.e(f'v_mov_b32 v{V_T}, 0')
        a.e('s_waitcnt lgkmcnt(0)\ns_barrier')
        a.e(f'ds_read_b128 {vr(V_QF)}, v{V_T} offset:{L_MAX}')
        a.e(f'ds_read_b32 v{V_SC}, v{V_LDS}')
        a.e('s_waitcnt lgkmcnt(0)')
        a.e(f'v_max3_f32 v{V_MAX}, v{V_QF}, v{V_QF+1}, v{V_QF+2}')
        a.e(f'v_max_f32 v{V_MAX}, v{V_MAX}, v{V_QF+3}')
        a.e(f'v_mul_f32 v{V_T2}, s{S_C}, v{V_MAX}')
        a.e(f'v_sub_f32 v{V_T2}, 0, v{V_T2}')

    def v_group(self, last):
        a = self.a
        PD = self.PD
        a.e('s_waitcnt lgkmcnt(0)')
        a.e(f'v_fma_f32 v{V_E}, v{V_SC}, s{S_C}, v{V_T2}')
        if not last:
            a.e(f'ds_read_b32 v{V_SC}, v{V_LDS} offset:256')
        a.e(f'v_exp_f32 v{V_E}, v{V_E}')
        a.e('s_nop 0')
        a.e(f'v_cvt_pk_bf16_f32 v{V_PB}, v{V_E}, v{V_E}')
        a.e(f'v_add_f32 v{V_L}, v{V_L}, v{V_E}')
        a.e('s_nop 0')
        def build(t):
            st = V_BX + 4 * (t & 1)
            for jj in range(4):
                a.e(f'v_and_b32_dpp v{st+jj}, v{V_PB}, v{V_MASK+jj} row_newbcast:{4*t} row_mask:0xf bank_mask:0xf')
        build(0)
        a.e('s_nop 0')
        for t in range(4):
            st = V_BX + 4 * (t & 1)
            for j in range(2):
                s = 2 * t + j
                a.vmwait(('ring', s))
                d = V_D0 if j == 0 else V_D1
                a.e(f'v_mfma_f32_16x16x32_bf16 {vr(d)}, {vr(V_RING + 4*s)}, {vr(st)}, {vr(d)}')
                n = s + PD
                if n < 8:
                    self.kvload('V', n, V_RING + 4*n, 0, tag=('ring', n))
                elif not last:
                    self.kvload('V', n - 8, V_RING + 4*(n-8), 32768, tag=('ring', n - 8))
                if j == 0 and t < 3:
                    build(t + 1)

    def v_phase(self):
        a = self.a
        a.e(f's_mov_b32 s{S_BASE}, 0')
        a.e(f's_mov_b32 s{S_CNT}, 31')
        for r in range(8):
            a.e(f'v_mov_b32 v{V_D0+r}, 0')
        entry = list(a.vm)
        a.label('L_vloop')
        self.v_group(False)
        assert a.vm == entry, (a.vm, entry)
        a.e(f'v_add_u32 v{V_LDS}, 256, v{V_LDS}')
        a.e(f's_add_u32 s{S_BASE}, s{S_BASE}, 32768')
        a.e(f's_sub_u32 s{S_CNT}, s{S_CNT}, 1')
        a.e(f's_cmp_lg_u32 s{S_CNT}, 0')
        a.e('s_cbranch_scc1 L_vloop')
        self.v_group(True)
        self.stamp()

    def tail(self):
        a = self.a
        v = V_L
        for ctl in ('row_ror:4 row_mask:0xf', 'row_ror:8 row_mask:0xf', 'row_bcast:15 row_mask:0xa', 'row_bcast:31 row_mask:0xc'):
            a.e('s_nop 1')
            a.e(f'v_add_f32_dpp v{v}, v{v}, v{v} {ctl} bank_mask:0xf')
        a.e(f's_lshl_b32 s{S_T}, s{S_W}, 2')
        a.e(f'v_mov_b32 v{V_T}, s{S_T}')
        a.e('s_mov_b32 exec_lo, 0\ns_mov_b32 exec_hi, 0x80000000')
        a.e(f'ds_write_b32 v{V_T}, v{v} offset:{L_LSUM}')
        a.e('s_mov_b64 exec, -1')
        a.e(f'v_lshrrev_b32 v{V_T}, 4, v{V_LANE}')
        a.e(f'v_lshlrev_b32 v{V_T}, 7, v{V_T}')
        a.e(f'v_and_b32 v{V_T1}, 15, v{V_LANE}')
        a.e(f'v_lshl_add_u32 v{V_T}, v{V_T1}, 2, v{V_T}')
        a.e(f's_lshl_b32 s{S_T}, s{S_W}, 10')
        a.e(f'v_add_u32 v{V_QF}, s{S_T}, v{V_T}')
        a.e(f's_mov_b32 exec_lo, 0x00ff00ff\ns_mov_b32 exec_hi, 0x00ff00ff')
        for j in range(2):
            for r in range(4):
                d = (V_D0 if j == 0 else V_D1) + r
                a.e(f'ds_write_b32 v{V_QF}, v{d} offset:{L_PART + j*512 + r*32}')
        a.e('s_mov_b64 exec, -1')
        a.e('s_waitcnt lgkmcnt(0)\ns_barrier')
        a.e(f'v_lshlrev_b32 v{V_E}, 2, v{V_TID}')
        for w in range(4):
            a.e(f'ds_read_b32 v{V_QF+w}, v{V_E} offset:{L_PART + w*1024}')
        a.e(f'v_lshlrev_b32 v{V_SC}, 1, v{V_TID}')
        a.e(f'v_lshrrev_b32 v{V_PB}, 4, v{V_LANE}')
        a.e(f'v_lshlrev_b32 v{V_PB}, 5, v{V_PB}')
        a.e(f's_lshl_b32 s{S_T}, s{S_W}, 7')
        a.e(f'v_add_u32 v{V_PB}, s{S_T}, v{V_PB}')
        a.e('s_waitcnt lgkmcnt(0)')
        a.e(f'v_add_f32 v{V_QF}, v{V_QF}, v{V_QF+1}')
        a.e(f'v_add_f32 v{V_QF+2}, v{V_QF+2}, v{V_QF+3}')
        a.e(f'v_add_f32 v{V_QF}, v{V_QF}, v{V_QF+2}')
        a.e(f'v_cvt_pk_bf16_f32 v{V_QF}, v{V_QF}, v{V_QF}')
        a.e(f'ds_write_b16 v{V_SC}, v{V_QF} offset:{L_BF}')
        a.e('s_waitcnt lgkmcnt(0)')
        for i in range(2):
            a.e(f'ds_read_b128 {vr(V_XD+4*i)}, v{V_PB} offset:{L_BF + 16*i}')
        a.e('s_waitcnt lgkmcnt(0)')
        def build(u):
            st = V_BX + 4 * (u & 1)
            xd = V_XD + (u >> 1)
            for jj in range(4):
                a.e(f'v_perm_b32 v{st+jj}, v{xd}, v{xd}, v{V_SEL + 2*jj + (u & 1)}')
        build(0)
        a.e('s_nop 1')
        for u in range(16):
            st = V_BX + 4 * (u & 1)
            for cb in range(4):
                y = V_Y + 4 * cb
                cacc = '0' if u == 0 else vr(y)
                a.e(f'v_mfma_f32_16x16x32_bf16 {vr(y)}, {ar(4*(4*u+cb))}, {vr(st)}, {cacc}')
                if cb == 0 and u < 15:
                    build(u + 1)
        a.e(f's_lshl_b32 s{S_T}, s{S_W}, 11')
        a.e(f'v_add_u32 v{V_QF}, s{S_T}, v{V_T}')
        a.e(f's_mov_b32 exec_lo, 0x00ff00ff\ns_mov_b32 exec_hi, 0x00ff00ff')
        a.e('s_nop 7')
        for r in range(4):
            if r == 2:
                a.e('s_mov_b32 exec_hi, 0x000000ff')
            for cb in range(4):
                a.e(f'ds_write_b32 v{V_QF}, v{V_Y+4*cb+r} offset:{L_Y + cb*448 + r*32}')
        a.e('s_mov_b64 exec, -1')
        a.e('s_waitcnt lgkmcnt(0)\ns_barrier')
        self.stamp()
        a.e(f's_cmp_lg_u32 s{S_W}, 0')
        a.e('s_cbranch_scc1 L_pubdone')
        a.e(f'v_lshlrev_b32 v{V_T}, 4, v{V_LANE}')
        for i in range(2):
            for w in range(4):
                a.e(f'ds_read_b128 {vr(V_FIN + 16*i + 4*w)}, v{V_T} offset:{L_Y + w*2048 + i*1024}')
        a.e(f'v_mov_b32 v{V_T1}, 0')
        a.e(f'ds_read_b128 {vr(V_QF)}, v{V_T1} offset:{L_LSUM}')
        a.e(f's_lshl_b32 s{S_T}, s{S_ROW}, 11')
        a.e(f'v_add_u32 v{V_T}, s{S_T}, v{V_T}')
        a.e(f's_lshl_b32 s{S_T}, s{S_ROW}, 3')
        a.e(f's_add_u32 s{S_T}, s{S_T}, {WS_ML}')
        a.e('s_waitcnt lgkmcnt(0)')
        for i in range(2):
            b = V_FIN + 16 * i
            for r in range(4):
                a.e(f'v_add_f32 v{b+r}, v{b+r}, v{b+4+r}')
                a.e(f'v_add_f32 v{b+8+r}, v{b+8+r}, v{b+12+r}')
            for r in range(4):
                a.e(f'v_add_f32 v{b+r}, v{b+r}, v{b+8+r}')
            a.e(f'buffer_store_dwordx4 {vr(b)}, v{V_T}, {sr(R_WS)}, 0 offen offset:{1024*i} sc1')
        a.e(f'v_add_f32 v{V_QF}, v{V_QF}, v{V_QF+1}')
        a.e(f'v_add_f32 v{V_QF+2}, v{V_QF+2}, v{V_QF+3}')
        a.e(f'v_add_f32 v{V_QF+1}, v{V_QF}, v{V_QF+2}')
        a.e(f'v_mov_b32 v{V_QF}, v{V_MAX}')
        a.e(f'v_mov_b32 v{V_T1}, s{S_T}')
        a.e('s_mov_b64 exec, 1')
        a.e(f'buffer_store_dwordx2 {vr(V_QF, 2)}, v{V_T1}, {sr(R_WS)}, 0 offen sc1')
        a.e('s_waitcnt vmcnt(0)')
        a.e(f's_lshl_b32 s{S_T}, s{S_B}, 2')
        a.e(f'v_mov_b32 v{V_T1}, s{S_T}')
        a.e(f'v_mov_b32 v{V_T2}, 1')
        a.e(f'global_atomic_add v{V_T2}, v{V_T1}, v{V_T2}, s[{S_DBG}:{S_DBG+1}] sc0')
        a.e(f'v_mov_b32 v{V_T1}, 0')
        a.e('s_waitcnt vmcnt(0)')
        a.e(f'ds_write_b32 v{V_T1}, v{V_T2} offset:{L_FLAG}')
        a.e('s_mov_b64 exec, -1')
        a.label('L_pubdone')
        a.e('s_waitcnt lgkmcnt(0)\ns_barrier')
        a.e(f'v_mov_b32 v{V_T1}, 0')
        a.e(f'ds_read_b32 v{V_T2}, v{V_T1} offset:{L_FLAG}')
        a.e('s_waitcnt lgkmcnt(0)')
        a.e(f'v_readfirstlane_b32 s{S_T}, v{V_T2}')
        self.stamp()
        a.e('s_nop 3')
        a.e(f's_cmp_lg_u32 s{S_T}, 63')
        a.e('s_cbranch_scc1 L_fin_skip')
        a.e(f's_lshl_b32 s{S_T}, s{S_B}, 6')
        a.e(f's_lshl_b32 s{S_CNT}, s{S_W}, 4')
        a.e(f's_add_u32 s{S_CNT}, s{S_CNT}, s{S_T}')
        a.e(f'v_and_b32 v{V_T1}, 15, v{V_LANE}')
        a.e(f'v_add_u32 v{V_T1}, s{S_CNT}, v{V_T1}')
        a.e(f'v_lshlrev_b32 v{V_T1}, 3, v{V_T1}')
        a.e(f'v_add_u32 v{V_T1}, {WS_ML}, v{V_T1}')
        a.vm = []
        a.vmop('ml', f'buffer_load_dwordx2 {vr(V_QF, 2)}, v{V_T1}, {sr(R_WS)}, 0 offen sc1')
        a.e(f's_lshl_b32 s{S_CNT}, s{S_CNT}, 11')
        a.e(f'v_lshlrev_b32 v{V_T}, 4, v{V_LANE}')
        a.e(f'v_add_u32 v{V_T}, s{S_CNT}, v{V_T}')
        for j in range(16):
            a.e(f's_mov_b32 s{S_T}, {j*2048}')
            for i in range(2):
                a.vmop(('y', j, i), f'buffer_load_dwordx4 {vr(V_FIN + 8*j + 4*i)}, v{V_T}, {sr(R_WS)}, s{S_T} offen offset:{1024*i} sc1')
        a.vmwait('ml')
        m, l, M, e = V_QF, V_QF + 1, V_QF + 2, V_QF + 3
        a.e(f'v_max_f32_dpp v{M}, v{m}, v{m} quad_perm:[1,0,3,2] row_mask:0xf bank_mask:0xf')
        a.e('s_nop 1')
        a.e(f'v_max_f32_dpp v{M}, v{M}, v{M} quad_perm:[2,3,0,1] row_mask:0xf bank_mask:0xf')
        a.e(f'v_sub_f32 v{e}, v{m}, v{M}')
        a.e(f'v_mul_f32 v{e}, s{S_C}, v{e}')
        a.e(f'v_exp_f32 v{e}, v{e}')
        a.e('s_nop 0')
        a.e(f'v_mul_f32 v{l}, v{l}, v{e}')
        a.e('s_nop 1')
        a.e(f'v_add_f32_dpp v{l}, v{l}, v{l} quad_perm:[1,0,3,2] row_mask:0xf bank_mask:0xf')
        a.e('s_nop 1')
        a.e(f'v_add_f32_dpp v{l}, v{l}, v{l} quad_perm:[2,3,0,1] row_mask:0xf bank_mask:0xf')
        a.e(f'v_rcp_f32 v{l}, v{l}')
        a.e('s_nop 0')
        a.e(f'v_mul_f32 v{e}, v{e}, v{l}')
        a.e('s_nop 0')
        for j in range(16):
            a.e(f'v_readlane_b32 s{S_WG+j}, v{e}, {j}')
        for r in range(8):
            a.e(f'v_mov_b32 v{V_D0+r}, 0')
        for j in range(16):
            a.vmwait(('y', j, 1))
            for i in range(2):
                for r in range(4):
                    a.e(f'v_fmac_f32 v{V_D0+4*i+r}, s{S_WG+j}, v{V_FIN+8*j+4*i+r}')
        a.e(f's_lshl_b32 s{S_T}, s{S_W}, 11')
        a.e(f'v_lshlrev_b32 v{V_T}, 4, v{V_LANE}')
        a.e(f'v_add_u32 v{V_T}, s{S_T}, v{V_T}')
        a.e(f'ds_write_b128 v{V_T}, {vr(V_D0)} offset:{L_Y}')
        a.e(f'ds_write_b128 v{V_T}, {vr(V_D1)} offset:{L_Y + 1024}')
        a.e('s_waitcnt lgkmcnt(0)\ns_barrier')
        a.e(f'v_lshlrev_b32 v{V_T}, 3, v{V_TID}')
        for w in range(4):
            a.e(f'ds_read_b64 {vr(V_QF+2*w, 2)}, v{V_T} offset:{L_Y + w*2048}')
        a.e(f's_mul_i32 s{S_T}, s{S_B}, 896')
        a.e(f'v_lshlrev_b32 v{V_T1}, 2, v{V_TID}')
        a.e(f'v_add_u32 v{V_T1}, s{S_T}, v{V_T1}')
        a.e(f'v_cmp_gt_u32 vcc, 224, v{V_TID}')
        a.e('s_waitcnt lgkmcnt(0)')
        for r in range(2):
            a.e(f'v_add_f32 v{V_QF+r}, v{V_QF+r}, v{V_QF+2+r}')
            a.e(f'v_add_f32 v{V_QF+4+r}, v{V_QF+4+r}, v{V_QF+6+r}')
            a.e(f'v_add_f32 v{V_QF+r}, v{V_QF+r}, v{V_QF+4+r}')
        a.e(f'v_cvt_pk_bf16_f32 v{V_QF}, v{V_QF}, v{V_QF+1}')
        a.e(f's_and_saveexec_b64 s[{S_EX}:{S_EX+1}], vcc')
        a.e('s_cbranch_execz L_fin_restore')
        a.e(f'buffer_store_dword v{V_QF}, v{V_T1}, {sr(R_OUT)}, 0 offen')
        a.label('L_fin_restore')
        a.e(f's_mov_b64 exec, s[{S_EX}:{S_EX+1}]')
        a.label('L_fin_skip')
        if self.stamps:
            self.stamp()
            a.e('s_waitcnt vmcnt(0) lgkmcnt(0)')
            a.e(f's_lshl_b32 s{S_T}, s2, 2')
            a.e(f's_add_u32 s{S_T}, s{S_T}, s{S_W}')
            a.e(f's_lshl_b32 s{S_T}, s{S_T}, 7')
            a.e(f's_add_u32 s{S_T}, s{S_T}, {WS_TS}')
            a.e(f'v_mov_b32 v{V_T1}, s{S_T}')
            a.e('s_mov_b64 exec, 1')
            for i in range(0, self.nstamp, 2):
                for k in range(4):
                    src = S_TS + 2*i + k
                    if i*2 + k < 2*self.nstamp:
                        a.e(f'v_mov_b32 v{V_QF+k}, s{src}')
                    else:
                        a.e(f'v_mov_b32 v{V_QF+k}, 0')
                a.e(f'buffer_store_dwordx4 {vr(V_QF)}, v{V_T1}, {sr(R_WS)}, 0 offen offset:{16*i//2*2//2*1 if False else 8*i}')
                a.e('s_nop 1')
            a.e('s_waitcnt vmcnt(0)')
        a.label('L_end')
        a.e('s_endpgm')

    def build(self):
        self.prologue()
        self.k_phase()
        self.midpoint()
        self.v_phase()
        self.tail()
        head = f'''; Kernarg layout (64 bytes, pointers only, base s[0:1]):
; @launch grid=(256,1,1) block=(256,1,1) lds={LDS_BYTES}
.amdgcn_target "amdgcn-amd-amdhsa--gfx950"
.text
.globl {KNAME}
.p2align 8
.type {KNAME},@function
{KNAME}:
'''
        tailtxt = f'''.section .rodata,"a"
.p2align 6
.amdhsa_kernel {KNAME}
  .amdhsa_next_free_vgpr 512
  .amdhsa_next_free_sgpr 102
  .amdhsa_accum_offset 256
  .amdhsa_group_segment_fixed_size 0
  .amdhsa_kernarg_size 64
  .amdhsa_user_sgpr_count 2
  .amdhsa_user_sgpr_kernarg_segment_ptr 1
  .amdhsa_system_sgpr_workgroup_id_x 1
.end_amdhsa_kernel
'''
        return head + self.a.text() + tailtxt

if __name__ == '__main__':
    ap = argparse.ArgumentParser()
    ap.add_argument('-o', default='/dev/stdout')
    ap.add_argument('--PD', type=int, default=8)
    ap.add_argument('--G', type=int, default=4)
    ap.add_argument('--LAG', type=int, default=14)
    ap.add_argument('--ninit', type=int, default=3)
    ap.add_argument('--stamps', action='store_true')
    ap.add_argument('--wflags', default='')
    ap.add_argument('--kvflags', default='nt')
    x = ap.parse_args()
    k = Kernel(PD=x.PD, G=x.G, LAG=x.LAG, stamps=x.stamps, wflags=x.wflags, kvflags=x.kvflags, ninit=x.ninit)
    open(x.o, 'w').write(k.build())
```

```python
import sys, argparse

KNAME = 'standalone__mha_block_cached__decode_kernel'

class Asm:
    def __init__(self):
        self.L = []
        self.vm = []
    def e(self, s):
        for ln in s.split('\n'):
            self.L.append('    ' + ln.strip())
    def label(self, s):
        self.L.append(s + ':')
    def c(self, s):
        self.L.append('    ; ' + s)
    def vmop(self, tag, s):
        if len(self.vm) >= 63:
            self.e('s_waitcnt vmcnt(62)')
            self.vm = self.vm[-62:]
        self.e(s)
        self.vm.append(tag)
    def vmwait(self, tag):
        if tag not in self.vm:
            return False
        i = self.vm.index(tag)
        n = len(self.vm) - 1 - i
        self.e(f's_waitcnt vmcnt({n})')
        self.vm = self.vm[i + 1:]
        return True
    def vmdrain(self):
        self.e('s_waitcnt vmcnt(0)')
        self.vm = []
    def text(self):
        return '\n'.join(self.L) + '\n'

S_W = 3
S_X, S_K, S_V, S_WQ, S_WO, S_OUT, S_DBG, S_WS = 4, 6, 8, 10, 12, 14, 16, 18
R_K, R_V, R_WQ, R_WO, R_X, R_WS, R_OUT = 20, 24, 28, 32, 36, 40, 44
S_H, S_B, S_SP, S_ROW = 48, 49, 50, 51
S_BASE, S_T, S_CNT, S_C = 52, 53, 54, 55
S_MT = 56
S_EX = 64
S_WG = 66
S_TS = 82
V_TID, V_LANE, V_OK, V_OV, V_OWQ, V_OWO = 0, 1, 2, 3, 4, 5
V_T0, V_LDS, V_MAX, V_L, V_SC, V_E, V_PB, V_T, V_T1, V_T2 = 6, 7, 8, 9, 10, 11, 12, 13, 14, 15
V_D0, V_D1 = 16, 20
V_MASK = 24
V_SEL = 28
V_BX = 36
V_XD = 44
V_BQ = 60
V_RING = 92
V_INIT = 124
V_QF = 220
V_Y = 124
V_FIN = 92
L_PART, L_BF, L_MAX, L_LSUM, L_FLAG, L_Y, L_SC = 0x0000, 0x1000, 0x1200, 0x1210, 0x1220, 0x1400, 0x4000
LDS_BYTES = 0xC000
WS_ML = 0x80000
WS_TS = 3 << 20

def vr(b, n=4):
    return f'v[{b}:{b+n-1}]'
def ar(b, n=4):
    return f'a[{b}:{b+n-1}]'
def sr(b, n=4):
    return f's[{b}:{b+n-1}]'

class Kernel:
    def __init__(self, PD=8, G=4, LAG=14, stamps=False, wflags='', kvflags='nt', ninit=3, dbg='', ainit=0, wpg=4, kfirst=8, kper=1.0, wqflags=None):
        self.dbg = dbg
        self.ainit, self.wpg, self.kfirst, self.kper = ainit, wpg, kfirst, kper
        self.wqflags = wflags if wqflags is None else wqflags
        self.PD, self.G, self.LAG, self.stamps = PD, G, LAG, stamps
        self.wflags, self.kvflags, self.ninit = wflags, kvflags, ninit
        self.a = Asm()
        self.nstamp = 0

    def stamp(self, pro=False):
        if self.stamps and (pro == ('pro' in self.dbg) or self.nstamp == 0) and self.nstamp < 8:
            r = S_TS + 2 * self.nstamp
            self.a.e(f's_memrealtime s[{r}:{r+1}]')
            self.nstamp += 1

    def tl(self):
        if self.stamps:
            a = self.a
            a.e('s_memrealtime s[98:99]')
            a.e('s_waitcnt lgkmcnt(0)')
            a.e('v_writelane_b32 v250, s98, m0')
            a.e('s_add_u32 m0, m0, 1')

    def blockoff(self, t):
        if self.G == 2: return t * 8192
        if self.G == 4: return (t >> 1) * 16384 + (t & 1) * 2048
        if self.G == 8: return t * 2048
    def waveshift(self):
        return {2: 11, 4: 12, 8: 13}[self.G]

    def kvload(self, kind, slot, dst, extra, base=S_BASE, tag=None):
        a = self.a
        t, j = slot >> 1, slot & 1
        off = extra + self.blockoff(t) + 256 * j
        hi, imm = off & ~0xFFF, off & 0xFFF
        srd, vo = (R_K, V_OK) if kind == 'K' else (R_V, V_OV)
        if base is None:
            if hi:
                a.e(f's_mov_b32 s{S_T}, {hi}')
                so = f's{S_T}'
            else:
                so = '0'
        elif hi:
            a.e(f's_add_u32 s{S_T}, s{base}, {hi}')
            so = f's{S_T}'
        else:
            so = f's{base}'
        a.vmop(tag, f'buffer_load_dwordx4 {dst}, v{vo}, {sr(srd)}, {so} offen offset:{imm} {self.kvflags}')

    def prologue(self):
        a = self.a
        a.e(f's_cmp_ge_u32 s2, 256')
        a.e('s_cbranch_scc1 L_end')
        a.e(f's_load_dwordx16 s[4:19], s[0:1], 0')
        self.stamp()
        a.e(f'v_lshrrev_b32 v{V_T0}, 6, v{V_TID}')
        a.e(f'v_and_b32 v{V_LANE}, 63, v{V_TID}')
        a.e(f'v_readfirstlane_b32 s{S_W}, v{V_T0}')
        a.c('workgroup id -> head (two heads per XCD under round-robin placement), batch, split')
        a.e(f's_and_b32 s{S_H}, s2, 7')
        a.e(f's_lshl_b32 s{S_H}, s{S_H}, 1')
        a.e(f's_bfe_u32 s{S_T}, s2, 0x10003')
        a.e(f's_add_u32 s{S_H}, s{S_H}, s{S_T}')
        a.e(f's_bfe_u32 s{S_SP}, s2, 0x20004')
        a.e(f's_lshr_b32 s{S_B}, s2, 6')
        a.e(f's_lshl_b32 s{S_ROW}, s{S_B}, 6')
        a.e(f's_lshl_b32 s{S_T}, s{S_H}, 2')
        a.e(f's_add_u32 s{S_ROW}, s{S_ROW}, s{S_T}')
        a.e(f's_add_u32 s{S_ROW}, s{S_ROW}, s{S_SP}')
        a.e(f's_mov_b32 s{S_C}, 0x3db8aa3b')
        if self.stamps:
            a.e('s_mov_b32 m0, 0')
        g, m, c, kk = V_T, V_T1, V_T2, V_E
        a.e(f'v_lshrrev_b32 v{g}, 4, v{V_LANE}')
        a.e(f'v_and_b32 v{m}, 15, v{V_LANE}')
        a.e(f'v_and_b32 v{c}, 3, v{V_LANE}')
        a.e(f'v_bfe_u32 v{kk}, v{V_LANE}, 2, 2')
        a.e(f'v_lshlrev_b32 v{V_OK}, 9, v{kk}')
        a.e(f'v_lshl_add_u32 v{V_OK}, v{g}, 6, v{V_OK}')
        a.e(f'v_lshl_add_u32 v{V_OK}, v{c}, 4, v{V_OK}')
        a.e(f'v_lshlrev_b32 v{V_OV}, 9, v{g}')
        a.e(f'v_lshl_add_u32 v{V_OV}, v{m}, 4, v{V_OV}')
        a.e(f's_lshl_b32 s{S_T}, s{S_W}, {self.waveshift()}')
        a.e(f'v_add_u32 v{V_OK}, s{S_T}, v{V_OK}')
        a.e(f'v_add_u32 v{V_OV}, s{S_T}, v{V_OV}')
        a.e(f's_mul_i32 s{S_T}, s{S_W}, {112*8192}')
        a.e(f'v_mul_u32_u24 v{V_OWQ}, {28*8192}, v{g}')
        a.e(f'v_lshl_add_u32 v{V_OWQ}, v{m}, 4, v{V_OWQ}')
        a.e(f'v_add_u32 v{V_OWQ}, s{S_T}, v{V_OWQ}')
        a.e(f's_mul_i32 s{S_T}, s{S_W}, {64*896}')
        a.e(f'v_mul_u32_u24 v{V_OWO}, {16*896}, v{g}')
        a.e(f'v_lshl_add_u32 v{V_OWO}, v{m}, 4, v{V_OWO}')
        a.e(f'v_add_u32 v{V_OWO}, s{S_T}, v{V_OWO}')
        a.e(f's_mul_i32 s{S_T}, s{S_W}, 224')
        a.e(f's_mul_i32 s{S_CNT}, s{S_B}, 896')
        a.e(f's_add_u32 s{S_T}, s{S_T}, s{S_CNT}')
        a.e(f'v_mul_u32_u24 v{V_T0}, 56, v{g}')
        a.e(f'v_add_u32 v{V_T0}, s{S_T}, v{V_T0}')
        a.e('s_waitcnt lgkmcnt(0)')
        a.e(f's_lshl_b32 s{S_T}, s{S_B}, 4')
        a.e(f's_add_u32 s{S_T}, s{S_T}, s{S_H}')
        a.e(f's_lshl_b32 s{S_T}, s{S_T}, 2')
        a.e(f's_add_u32 s{S_T}, s{S_T}, s{S_SP}')
        a.e(f's_lshl_b32 s{S_CNT}, s{S_T}, 20')
        for (p, r) in ((S_K, R_K), (S_V, R_V)):
            a.e(f's_add_u32 s{r}, s{p}, s{S_CNT}')
            a.e(f's_addc_u32 s{r+1}, s{p+1}, 0')
            a.e(f's_mov_b32 s{r+2}, 0x100000')
            a.e(f's_mov_b32 s{r+3}, 0x20000')
        a.e(f's_mov_b32 s{R_X}, s{S_X}')
        a.e(f's_mov_b32 s{R_X+1}, s{S_X+1}')
        a.e(f's_mov_b32 s{R_X+2}, 3584')
        a.e(f's_mov_b32 s{R_X+3}, 0x20000')
        a.e(f's_lshl_b32 s{S_T}, s{S_H}, 9')
        a.e(f's_add_u32 s{R_WQ}, s{S_WQ}, s{S_T}')
        a.e(f's_addc_u32 s{R_WQ+1}, s{S_WQ+1}, 0')
        a.e(f's_sub_u32 s{R_WQ+2}, {448*8192}, s{S_T}')
        a.e(f's_mov_b32 s{R_WQ+3}, 0x20000')
        a.e(f's_mul_i32 s{S_T}, s{S_H}, {256*896}')
        a.e(f's_add_u32 s{R_WO}, s{S_WO}, s{S_T}')
        a.e(f's_addc_u32 s{R_WO+1}, s{S_WO+1}, 0')
        a.e(f's_mov_b32 s{R_WO+2}, {256*896}')
        a.e(f's_mov_b32 s{R_WO+3}, 0x20000')
        for i, (n, nm) in enumerate(((4, 'x4'), (4, 'x4'), (4, 'x4'), (2, 'x2'))):
            a.vmop(('x', i), f'buffer_load_dword{nm} {vr(V_XD+4*i, n)}, v{V_T0}, {sr(R_X)}, 0 offen offset:{16*i}')
        a.e(f's_mov_b32 s{R_WS}, s{S_WS}')
        a.e(f's_mov_b32 s{R_WS+1}, s{S_WS+1}')
        a.e(f's_mov_b32 s{R_WS+2}, 0x400000')
        a.e(f's_mov_b32 s{R_WS+3}, 0x20000')
        a.e(f's_mov_b32 s{R_OUT}, s{S_OUT}')
        a.e(f's_mov_b32 s{R_OUT+1}, s{S_OUT+1}')
        a.e(f's_mov_b32 s{R_OUT+2}, 3584')
        a.e(f's_mov_b32 s{R_OUT+3}, 0x20000')

        ninit = self.ninit
        ntot = ninit + self.ainit
        def initreg(gi, s):
            if gi < ninit: return vr(V_INIT + 32 * gi + 4 * s)
            return ar(224 + 4 * s)
        self.initreg = initreg
        kq = [('ring', s) for s in range(8)] + [(('init', gi), s) for gi in range(ntot) for s in range(8)]
        def k_issue(n):
            for _ in range(n):
                if not kq: return
                grp, s = kq.pop(0)
                if grp == 'ring':
                    self.kvload('K', s, vr(V_RING + 4 * s), ntot * 32768, base=None, tag=('ring', s))
                else:
                    gi = grp[1]
                    self.kvload('K', s, initreg(gi, s), gi * 32768, base=None, tag=('init', gi, s))
        def wq_issue(u):
            a.e(f's_mov_b32 s{S_T}, {u*8192}')
            for j in range(2):
                a.vmop(('wq', u, j), f'buffer_load_dwordx4 {ar(8*u+4*j)}, v{V_OWQ}, {sr(R_WQ)}, s{S_T} offen offset:{256*j} {self.wqflags}')
        def consume(u):
            if u == 0:
                a.vmwait(('x', 3))
            st = V_BX + 4 * (u & 1)
            xd = V_XD + (u >> 1)
            for jj in range(4):
                a.e(f'v_perm_b32 v{st+jj}, v{xd}, v{xd}, v{V_SEL + 2*jj + (u & 1)}')
            a.vmwait(('wq', u, 1))
            if u in (0, 7, 14, 21, 27): self.stamp(True)
            a.e('s_nop 1')
            for j in range(2):
                d = V_D0 if j == 0 else V_D1
                cacc = '0' if u == 0 else vr(d)
                a.e(f'v_mfma_f32_16x16x32_bf16 {vr(d)}, {ar(8*u+4*j)}, {vr(st)}, {cacc}')
        k_issue(self.kfirst)
        acc = 0.0
        done = 0
        for u in range(28):
            wq_issue(u)
            acc += self.kper
            while acc >= 1.0:
                k_issue(1); acc -= 1.0
            if u == 1:
                self.lane_consts()
            if u >= self.LAG:
                consume(done); done += 1
        k_issue(64)
        while done < 28:
            consume(done); done += 1
        self.stamp()
        self.stamp(True)
        n8 = V_T1
        a.e(f'v_lshrrev_b32 v{V_T}, 4, v{V_LANE}')
        a.e(f'v_lshlrev_b32 v{V_T}, 7, v{V_T}')
        a.e(f'v_lshl_add_u32 v{V_T}, v{V_T1}, 2, v{V_T}')
        a.e(f's_lshl_b32 s{S_T}, s{S_W}, 10')
        a.e(f'v_add_u32 v{V_QF}, s{S_T}, v{V_T}')
        a.e(f's_mov_b32 exec_lo, 0x00ff00ff\ns_mov_b32 exec_hi, 0x00ff00ff')
        a.e('s_nop 7')
        for j in range(2):
            for r in range(4):
                d = (V_D0 if j == 0 else V_D1) + r
                a.e(f'ds_write_b32 v{V_QF}, v{d} offset:{L_PART + j*512 + r*32}')
        a.e('s_mov_b64 exec, -1')
        a.e('s_waitcnt lgkmcnt(0)\ns_barrier')
        a.e(f'v_lshlrev_b32 v{V_T}, 2, v{V_TID}')
        for w in range(4):
            a.e(f'ds_read_b32 v{V_QF+w}, v{V_T} offset:{L_PART + w*1024}')
        a.e(f'v_lshlrev_b32 v{V_T2}, 1, v{V_TID}')
        a.e('s_waitcnt lgkmcnt(0)')
        a.e(f'v_add_f32 v{V_QF}, v{V_QF}, v{V_QF+1}')
        a.e(f'v_add_f32 v{V_QF+2}, v{V_QF+2}, v{V_QF+3}')
        a.e(f'v_add_f32 v{V_QF}, v{V_QF}, v{V_QF+2}')
        a.e(f'v_cvt_pk_bf16_f32 v{V_QF}, v{V_QF}, v{V_QF}')
        a.e(f'ds_write_b16 v{V_T2}, v{V_QF} offset:{L_BF}')
        a.e(f'v_lshrrev_b32 v{V_T}, 4, v{V_LANE}')
        a.e(f'v_lshlrev_b32 v{V_T}, 6, v{V_T}')
        a.e(f'v_and_b32 v{V_T2}, 3, v{V_LANE}')
        a.e(f'v_lshl_add_u32 v{V_T}, v{V_T2}, 4, v{V_T}')
        a.e('s_waitcnt lgkmcnt(0)\ns_barrier')
        for j in range(2):
            a.e(f'ds_read_b128 {vr(V_QF+4*j)}, v{V_T} offset:{L_BF + 256*j}')
        for t in range(4):
            mk = 0x000F000F << (4 * t)
            a.e(f's_mov_b32 s{S_MT+2*t}, {mk:#x}\ns_mov_b32 s{S_MT+2*t+1}, {mk:#x}')
        a.e(f's_lshl_b32 s{S_T}, s{S_W}, 13')
        a.e(f's_add_u32 s{S_T}, s{S_T}, {L_SC}')
        a.e(f'v_lshlrev_b32 v{V_LDS}, 2, v{V_LANE}')
        a.e(f'v_add_u32 v{V_LDS}, s{S_T}, v{V_LDS}')
        a.e(f'v_mov_b32 v{V_MAX}, 0xff800000')
        a.e('s_waitcnt lgkmcnt(0)')
        for t in range(4):
            for j in range(2):
                for r in range(4):
                    a.e(f'v_cndmask_b32 v{V_BQ + 4*(2*t+j) + r}, 0, v{V_QF+4*j+r}, s[{S_MT+2*t}:{S_MT+2*t+1}]')
        a.e('s_nop 1')
        self.stamp()
        self.stamp(True)

    def lane_consts(self):
        a = self.a
        n = V_T1
        a.e(f'v_and_b32 v{V_T2}, 1, v{n}')
        a.e(f'v_cmp_eq_u32 vcc, 1, v{V_T2}')
        a.e(f'v_mov_b32 v{V_E}, 0x0c0c0100\nv_mov_b32 v{V_PB}, 0x01000c0c')
        a.e(f'v_cndmask_b32 v{V_E}, v{V_E}, v{V_PB}, vcc')
        a.e(f'v_mov_b32 v{V_PB}, 0x0c0c0302\nv_mov_b32 v{V_SC}, 0x03020c0c')
        a.e(f'v_cndmask_b32 v{V_PB}, v{V_PB}, v{V_SC}, vcc')
        a.e(f'v_mov_b32 v{V_SC}, 0x0000ffff\nv_mov_b32 v{V_L}, 0xffff0000')
        a.e(f'v_cndmask_b32 v{V_SC}, v{V_SC}, v{V_L}, vcc')
        a.e(f'v_lshrrev_b32 v{V_T2}, 1, v{n}')
        a.e(f'v_mov_b32 v{V_L}, 0x0c0c0c0c')
        for jj in range(4):
            a.e(f'v_cmp_eq_u32 vcc, {jj}, v{V_T2}')
            a.e('s_nop 1')
            a.e(f'v_cndmask_b32 v{V_SEL+2*jj}, v{V_L}, v{V_E}, vcc')
            a.e(f'v_cndmask_b32 v{V_SEL+2*jj+1}, v{V_L}, v{V_PB}, vcc')
            a.e(f'v_cndmask_b32 v{V_MASK+jj}, 0, v{V_SC}, vcc')
        a.e(f'v_mov_b32 v{V_L}, 0')

    def score_finish(self, off):
        a = self.a
        a.e('s_nop 7')
        dpp = 'row_mask:0xf bank_mask:0xf'
        a.e(f'v_mov_b32_dpp v{V_T}, v{V_D0} quad_perm:[0,0,0,0] {dpp}')
        a.e(f'v_mov_b32_dpp v{V_T1}, v{V_D0+2} quad_perm:[2,2,2,2] {dpp}')
        a.e('s_nop 0')
        a.e(f'v_add_f32_dpp v{V_T}, v{V_D0+1}, v{V_T} quad_perm:[1,1,1,1] {dpp}')
        a.e(f'v_add_f32_dpp v{V_T1}, v{V_D0+3}, v{V_T1} quad_perm:[3,3,3,3] {dpp}')
        a.e(f'v_add_f32 v{V_T}, v{V_T}, v{V_T1}')
        a.e(f'ds_write_b32 v{V_LDS}, v{V_T} offset:{off}')
        a.e(f'v_max_f32 v{V_MAX}, v{V_MAX}, v{V_T}')

    def wo_issue(self):
        if not self.woq or 'nowo' in self.dbg: return
        z = self.woq.pop(0)
        u, cb = z >> 2, z & 3
        a = self.a
        a.e(f's_mov_b32 s{S_T}, {u*896}')
        a.vmop(('wo', z), f'buffer_load_dwordx4 {ar(4*z)}, v{V_OWO}, {sr(R_WO)}, s{S_T} offen offset:{224*cb} {self.wflags}')

    def k_group(self, src, nxt, scoff, first_ring=False, nwo=0):
        a = self.a
        PD = self.PD
        wo_at = {0: [], 1: [3], 2: [1, 5], 3: [1, 4, 6], 4: [1, 3, 5, 7], 8: list(range(8))}[nwo]
        for s in range(8):
            a.vmwait(src['tag'](s))
            cacc = '0' if s == 0 else vr(V_D0)
            a.e(f'v_mfma_f32_16x16x32_bf16 {vr(V_D0)}, {src["reg"](s)}, {vr(V_BQ + 4*s)}, {cacc}')
            if nxt is not None:
                n = s + PD
                if n < 8:
                    if not first_ring:
                        self.kvload('K', n, vr(V_RING + 4*n), 0, tag=('ring', n))
                elif nxt == 'K':
                    self.kvload('K', n - 8, vr(V_RING + 4*(n-8)), 32768, tag=('ring', n - 8))
                else:
                    self.kvload('V', n - 8, vr(V_RING + 4*(n-8)), 0, base=None, tag=('ring', n - 8))
            if s in wo_at:
                self.wo_issue()
        self.score_finish(scoff)
        self.tl()

    def k_phase(self):
        a = self.a
        ntot = self.ninit + self.ainit
        self.woq = list(range(64))
        ring = {'reg': lambda s: vr(V_RING + 4*s), 'tag': lambda s: ('ring', s)}
        a.e(f's_mov_b32 s{S_BASE}, {ntot*32768}')
        a.e(f'v_mov_b32 v{V_PB}, v{V_LDS}')
        self.k_group(ring, 'K', ntot * 256, first_ring=True)
        a.e(f's_add_u32 s{S_BASE}, s{S_BASE}, 32768')
        for gi in range(ntot):
            self.k_group({'reg': (lambda s, gi=gi: self.initreg(gi, s)), 'tag': (lambda s, gi=gi: ('init', gi, s))}, None, gi * 256)
        g = ntot + 1
        while self.woq and 'nowo' not in self.dbg:
            assert g <= 30
            self.k_group(ring, 'K', g * 256, nwo=self.wpg)
            a.e(f's_add_u32 s{S_BASE}, s{S_BASE}, 32768')
            g += 1
        while any(t[0] != 'ring' for t in a.vm):
            assert g <= 30
            self.k_group(ring, 'K', g * 256)
            a.e(f's_add_u32 s{S_BASE}, s{S_BASE}, 32768')
            g += 1
        a.e(f'v_add_u32 v{V_LDS}, {g*256}, v{V_LDS}')
        if g <= 30:
            a.e(f's_mov_b32 s{S_CNT}, {31 - g}')
            entry = list(a.vm)
            a.label('L_kloop')
            self.k_group(ring, 'K', 0)
            assert a.vm == entry, (a.vm, entry)
            a.e(f'v_add_u32 v{V_LDS}, 256, v{V_LDS}')
            a.e(f's_add_u32 s{S_BASE}, s{S_BASE}, 32768')
            a.e(f's_sub_u32 s{S_CNT}, s{S_CNT}, 1')
            a.e(f's_cmp_lg_u32 s{S_CNT}, 0')
            a.e('s_cbranch_scc1 L_kloop')
        self.k_group(ring, 'V', 0)
        a.e(f'v_mov_b32 v{V_LDS}, v{V_PB}')
        self.stamp()

    def midpoint(self):
        a = self.a
        v = V_MAX
        for ctl in ('row_ror:4 row_mask:0xf', 'row_ror:8 row_mask:0xf', 'row_bcast:15 row_mask:0xa', 'row_bcast:31 row_mask:0xc'):
            a.e('s_nop 1')
            a.e(f'v_max_f32_dpp v{v}, v{v}, v{v} {ctl} bank_mask:0xf')
        a.e(f's_lshl_b32 s{S_T}, s{S_W}, 2')
        a.e(f'v_mov_b32 v{V_T}, s{S_T}')
        a.e('s_mov_b32 exec_lo, 0\ns_mov_b32 exec_hi, 0x80000000')
        a.e(f'ds_write_b32 v{V_T}, v{v} offset:{L_MAX}')
        a.e('s_mov_b64 exec, -1')
        a.e(f'v_mov_b32 v{V_T}, 0')
        a.e('s_waitcnt lgkmcnt(0)\ns_barrier')
        a.e(f'ds_read_b128 {vr(V_QF)}, v{V_T} offset:{L_MAX}')
        a.e(f'ds_read_b32 v{V_SC}, v{V_LDS}')
        a.e('s_waitcnt lgkmcnt(0)')
        a.e(f'v_max3_f32 v{V_MAX}, v{V_QF}, v{V_QF+1}, v{V_QF+2}')
        a.e(f'v_max_f32 v{V_MAX}, v{V_MAX}, v{V_QF+3}')
        a.e(f'v_mul_f32 v{V_T2}, s{S_C}, v{V_MAX}')
        a.e(f'v_sub_f32 v{V_T2}, 0, v{V_T2}')

    def v_group(self, last):
        a = self.a
        PD = self.PD
        a.e('s_waitcnt lgkmcnt(0)')
        a.e(f'v_fma_f32 v{V_E}, v{V_SC}, s{S_C}, v{V_T2}')
        if not last:
            a.e(f'ds_read_b32 v{V_SC}, v{V_LDS} offset:256')
        a.e(f'v_exp_f32 v{V_E}, v{V_E}')
        a.e('s_nop 0')
        a.e(f'v_cvt_pk_bf16_f32 v{V_PB}, v{V_E}, v{V_E}')
        a.e(f'v_add_f32 v{V_L}, v{V_L}, v{V_E}')
        a.e('s_nop 0')
        def build(t):
            st = V_BX + 4 * (t & 1)
            for jj in range(4):
                a.e(f'v_and_b32_dpp v{st+jj}, v{V_PB}, v{V_MASK+jj} row_newbcast:{4*t} row_mask:0xf bank_mask:0xf')
        build(0)
        a.e('s_nop 0')
        for t in range(4):
            st = V_BX + 4 * (t & 1)
            for j in range(2):
                s = 2 * t + j
                a.vmwait(('ring', s))
                d = V_D0 if j == 0 else V_D1
                a.e(f'v_mfma_f32_16x16x32_bf16 {vr(d)}, {vr(V_RING + 4*s)}, {vr(st)}, {vr(d)}')
                n = s + PD
                if n < 8:
                    self.kvload('V', n, vr(V_RING + 4*n), 0, tag=('ring', n))
                elif not last:
                    self.kvload('V', n - 8, vr(V_RING + 4*(n-8)), 32768, tag=('ring', n - 8))
                if j == 0 and t < 3:
                    build(t + 1)
        self.tl()

    def v_phase(self):
        a = self.a
        a.e(f's_mov_b32 s{S_BASE}, 0')
        a.e(f's_mov_b32 s{S_CNT}, 31')
        for r in range(8):
            a.e(f'v_mov_b32 v{V_D0+r}, 0')
        entry = list(a.vm)
        a.label('L_vloop')
        self.v_group(False)
        assert a.vm == entry, (a.vm, entry)
        a.e(f'v_add_u32 v{V_LDS}, 256, v{V_LDS}')
        a.e(f's_add_u32 s{S_BASE}, s{S_BASE}, 32768')
        a.e(f's_sub_u32 s{S_CNT}, s{S_CNT}, 1')
        a.e(f's_cmp_lg_u32 s{S_CNT}, 0')
        a.e('s_cbranch_scc1 L_vloop')
        self.v_group(True)
        self.stamp()

    def tail(self):
        a = self.a
        v = V_L
        for ctl in ('row_ror:4 row_mask:0xf', 'row_ror:8 row_mask:0xf', 'row_bcast:15 row_mask:0xa', 'row_bcast:31 row_mask:0xc'):
            a.e('s_nop 1')
            a.e(f'v_add_f32_dpp v{v}, v{v}, v{v} {ctl} bank_mask:0xf')
        a.e(f's_lshl_b32 s{S_T}, s{S_W}, 2')
        a.e(f'v_mov_b32 v{V_T}, s{S_T}')
        a.e('s_mov_b32 exec_lo, 0\ns_mov_b32 exec_hi, 0x80000000')
        a.e(f'ds_write_b32 v{V_T}, v{v} offset:{L_LSUM}')
        a.e('s_mov_b64 exec, -1')
        a.e(f'v_lshrrev_b32 v{V_T}, 4, v{V_LANE}')
        a.e(f'v_lshlrev_b32 v{V_T}, 7, v{V_T}')
        a.e(f'v_and_b32 v{V_T1}, 15, v{V_LANE}')
        a.e(f'v_lshl_add_u32 v{V_T}, v{V_T1}, 2, v{V_T}')
        a.e(f's_lshl_b32 s{S_T}, s{S_W}, 10')
        a.e(f'v_add_u32 v{V_QF}, s{S_T}, v{V_T}')
        a.e(f's_mov_b32 exec_lo, 0x00ff00ff\ns_mov_b32 exec_hi, 0x00ff00ff')
        for j in range(2):
            for r in range(4):
                d = (V_D0 if j == 0 else V_D1) + r
                a.e(f'ds_write_b32 v{V_QF}, v{d} offset:{L_PART + j*512 + r*32}')
        a.e('s_mov_b64 exec, -1')
        a.e('s_waitcnt lgkmcnt(0)\ns_barrier')
        a.e(f'v_lshlrev_b32 v{V_E}, 2, v{V_TID}')
        for w in range(4):
            a.e(f'ds_read_b32 v{V_QF+w}, v{V_E} offset:{L_PART + w*1024}')
        a.e(f'v_lshlrev_b32 v{V_SC}, 1, v{V_TID}')
        a.e(f'v_lshrrev_b32 v{V_PB}, 4, v{V_LANE}')
        a.e(f'v_lshlrev_b32 v{V_PB}, 5, v{V_PB}')
        a.e(f's_lshl_b32 s{S_T}, s{S_W}, 7')
        a.e(f'v_add_u32 v{V_PB}, s{S_T}, v{V_PB}')
        a.e('s_waitcnt lgkmcnt(0)')
        a.e(f'v_add_f32 v{V_QF}, v{V_QF}, v{V_QF+1}')
        a.e(f'v_add_f32 v{V_QF+2}, v{V_QF+2}, v{V_QF+3}')
        a.e(f'v_add_f32 v{V_QF}, v{V_QF}, v{V_QF+2}')
        a.e(f'v_cvt_pk_bf16_f32 v{V_QF}, v{V_QF}, v{V_QF}')
        a.e(f'ds_write_b16 v{V_SC}, v{V_QF} offset:{L_BF}')
        a.e('s_waitcnt lgkmcnt(0)')
        for i in range(2):
            a.e(f'ds_read_b128 {vr(V_XD+4*i)}, v{V_PB} offset:{L_BF + 16*i}')
        a.e('s_waitcnt lgkmcnt(0)')
        def build(u):
            st = V_BX + 4 * (u & 1)
            xd = V_XD + (u >> 1)
            for jj in range(4):
                a.e(f'v_perm_b32 v{st+jj}, v{xd}, v{xd}, v{V_SEL + 2*jj + (u & 1)}')
        build(0)
        a.e('s_nop 1')
        for u in range(16):
            st = V_BX + 4 * (u & 1)
            for cb in range(4):
                y = V_Y + 4 * cb
                cacc = '0' if u == 0 else vr(y)
                a.e(f'v_mfma_f32_16x16x32_bf16 {vr(y)}, {ar(4*(4*u+cb))}, {vr(st)}, {cacc}')
                if cb == 0 and u < 15:
                    build(u + 1)
        a.e(f's_lshl_b32 s{S_T}, s{S_W}, 11')
        a.e(f'v_add_u32 v{V_QF}, s{S_T}, v{V_T}')
        a.e(f's_mov_b32 exec_lo, 0x00ff00ff\ns_mov_b32 exec_hi, 0x00ff00ff')
        a.e('s_nop 7')
        for r in range(4):
            if r == 2:
                a.e('s_mov_b32 exec_hi, 0x000000ff')
            for cb in range(4):
                a.e(f'ds_write_b32 v{V_QF}, v{V_Y+4*cb+r} offset:{L_Y + cb*448 + r*32}')
        a.e('s_mov_b64 exec, -1')
        a.e('s_waitcnt lgkmcnt(0)\ns_barrier')
        self.stamp()
        a.e(f's_cmp_lg_u32 s{S_W}, 0')
        a.e('s_cbranch_scc1 L_pubdone')
        a.e(f'v_lshlrev_b32 v{V_T}, 4, v{V_LANE}')
        for i in range(2):
            for w in range(4):
                a.e(f'ds_read_b128 {vr(V_FIN + 16*i + 4*w)}, v{V_T} offset:{L_Y + w*2048 + i*1024}')
        a.e(f'v_mov_b32 v{V_T1}, 0')
        a.e(f'ds_read_b128 {vr(V_QF)}, v{V_T1} offset:{L_LSUM}')
        a.e(f's_lshl_b32 s{S_T}, s{S_ROW}, 11')
        a.e(f'v_add_u32 v{V_T}, s{S_T}, v{V_T}')
        a.e(f's_lshl_b32 s{S_T}, s{S_ROW}, 3')
        a.e(f's_add_u32 s{S_T}, s{S_T}, {WS_ML}')
        a.e('s_waitcnt lgkmcnt(0)')
        for i in range(2):
            b = V_FIN + 16 * i
            for r in range(4):
                a.e(f'v_add_f32 v{b+r}, v{b+r}, v{b+4+r}')
                a.e(f'v_add_f32 v{b+8+r}, v{b+8+r}, v{b+12+r}')
            for r in range(4):
                a.e(f'v_add_f32 v{b+r}, v{b+r}, v{b+8+r}')
            a.e(f'buffer_store_dwordx4 {vr(b)}, v{V_T}, {sr(R_WS)}, 0 offen offset:{1024*i} sc1')
        a.e(f'v_add_f32 v{V_QF}, v{V_QF}, v{V_QF+1}')
        a.e(f'v_add_f32 v{V_QF+2}, v{V_QF+2}, v{V_QF+3}')
        a.e(f'v_add_f32 v{V_QF+1}, v{V_QF}, v{V_QF+2}')
        a.e(f'v_mov_b32 v{V_QF}, v{V_MAX}')
        a.e(f'v_mov_b32 v{V_T1}, s{S_T}')
        a.e('s_mov_b64 exec, 1')
        a.e(f'buffer_store_dwordx2 {vr(V_QF, 2)}, v{V_T1}, {sr(R_WS)}, 0 offen sc1')
        a.e('s_waitcnt vmcnt(0)')
        a.e(f's_lshl_b32 s{S_T}, s{S_B}, 2')
        a.e(f'v_mov_b32 v{V_T1}, s{S_T}')
        a.e(f'v_mov_b32 v{V_T2}, 1')
        a.e(f'global_atomic_add v{V_T2}, v{V_T1}, v{V_T2}, s[{S_DBG}:{S_DBG+1}] sc0')
        a.e(f'v_mov_b32 v{V_T1}, 0')
        a.e('s_waitcnt vmcnt(0)')
        a.e(f'ds_write_b32 v{V_T1}, v{V_T2} offset:{L_FLAG}')
        a.e('s_mov_b64 exec, -1')
        a.label('L_pubdone')
        a.e('s_waitcnt lgkmcnt(0)\ns_barrier')
        a.e(f'v_mov_b32 v{V_T1}, 0')
        a.e(f'ds_read_b32 v{V_T2}, v{V_T1} offset:{L_FLAG}')
        a.e('s_waitcnt lgkmcnt(0)')
        a.e(f'v_readfirstlane_b32 s{S_T}, v{V_T2}')
        self.stamp()
        a.e('s_nop 3')
        a.e(f's_cmp_lg_u32 s{S_T}, 63')
        a.e('s_cbranch_scc1 L_fin_skip')
        a.e(f's_lshl_b32 s{S_T}, s{S_B}, 6')
        a.e(f's_lshl_b32 s{S_CNT}, s{S_W}, 4')
        a.e(f's_add_u32 s{S_CNT}, s{S_CNT}, s{S_T}')
        a.e(f'v_and_b32 v{V_T1}, 15, v{V_LANE}')
        a.e(f'v_add_u32 v{V_T1}, s{S_CNT}, v{V_T1}')
        a.e(f'v_lshlrev_b32 v{V_T1}, 3, v{V_T1}')
        a.e(f'v_add_u32 v{V_T1}, {WS_ML}, v{V_T1}')
        a.vm = []
        a.vmop('ml', f'buffer_load_dwordx2 {vr(V_QF, 2)}, v{V_T1}, {sr(R_WS)}, 0 offen sc1')
        a.e(f's_lshl_b32 s{S_CNT}, s{S_CNT}, 11')
        a.e(f'v_lshlrev_b32 v{V_T}, 4, v{V_LANE}')
        a.e(f'v_add_u32 v{V_T}, s{S_CNT}, v{V_T}')
        for j in range(16):
            a.e(f's_mov_b32 s{S_T}, {j*2048}')
            for i in range(2):
                a.vmop(('y', j, i), f'buffer_load_dwordx4 {vr(V_FIN + 8*j + 4*i)}, v{V_T}, {sr(R_WS)}, s{S_T} offen offset:{1024*i} sc1')
        a.vmwait('ml')
        m, l, M, e = V_QF, V_QF + 1, V_QF + 2, V_QF + 3
        a.e(f'v_max_f32_dpp v{M}, v{m}, v{m} quad_perm:[1,0,3,2] row_mask:0xf bank_mask:0xf')
        a.e('s_nop 1')
        a.e(f'v_max_f32_dpp v{M}, v{M}, v{M} quad_perm:[2,3,0,1] row_mask:0xf bank_mask:0xf')
        a.e(f'v_sub_f32 v{e}, v{m}, v{M}')
        a.e(f'v_mul_f32 v{e}, s{S_C}, v{e}')
        a.e(f'v_exp_f32 v{e}, v{e}')
        a.e('s_nop 0')
        a.e(f'v_mul_f32 v{l}, v{l}, v{e}')
        a.e('s_nop 1')
        a.e(f'v_add_f32_dpp v{l}, v{l}, v{l} quad_perm:[1,0,3,2] row_mask:0xf bank_mask:0xf')
        a.e('s_nop 1')
        a.e(f'v_add_f32_dpp v{l}, v{l}, v{l} quad_perm:[2,3,0,1] row_mask:0xf bank_mask:0xf')
        a.e(f'v_rcp_f32 v{l}, v{l}')
        a.e('s_nop 0')
        a.e(f'v_mul_f32 v{e}, v{e}, v{l}')
        a.e('s_nop 0')
        for j in range(16):
            a.e(f'v_readlane_b32 s{S_WG+j}, v{e}, {j}')
        for r in range(8):
            a.e(f'v_mov_b32 v{V_D0+r}, 0')
        for j in range(16):
            a.vmwait(('y', j, 1))
            for i in range(2):
                for r in range(4):
                    a.e(f'v_fmac_f32 v{V_D0+4*i+r}, s{S_WG+j}, v{V_FIN+8*j+4*i+r}')
        a.e(f's_lshl_b32 s{S_T}, s{S_W}, 11')
        a.e(f'v_lshlrev_b32 v{V_T}, 4, v{V_LANE}')
        a.e(f'v_add_u32 v{V_T}, s{S_T}, v{V_T}')
        a.e(f'ds_write_b128 v{V_T}, {vr(V_D0)} offset:{L_Y}')
        a.e(f'ds_write_b128 v{V_T}, {vr(V_D1)} offset:{L_Y + 1024}')
        a.e('s_waitcnt lgkmcnt(0)\ns_barrier')
        a.e(f'v_lshlrev_b32 v{V_T}, 3, v{V_TID}')
        for w in range(4):
            a.e(f'ds_read_b64 {vr(V_QF+2*w, 2)}, v{V_T} offset:{L_Y + w*2048}')
        a.e(f's_mul_i32 s{S_T}, s{S_B}, 896')
        a.e(f'v_lshlrev_b32 v{V_T1}, 2, v{V_TID}')
        a.e(f'v_add_u32 v{V_T1}, s{S_T}, v{V_T1}')
        a.e(f'v_cmp_gt_u32 vcc, 224, v{V_TID}')
        a.e('s_waitcnt lgkmcnt(0)')
        for r in range(2):
            a.e(f'v_add_f32 v{V_QF+r}, v{V_QF+r}, v{V_QF+2+r}')
            a.e(f'v_add_f32 v{V_QF+4+r}, v{V_QF+4+r}, v{V_QF+6+r}')
            a.e(f'v_add_f32 v{V_QF+r}, v{V_QF+r}, v{V_QF+4+r}')
        a.e(f'v_cvt_pk_bf16_f32 v{V_QF}, v{V_QF}, v{V_QF+1}')
        a.e(f's_and_saveexec_b64 s[{S_EX}:{S_EX+1}], vcc')
        a.e('s_cbranch_execz L_fin_restore')
        a.e(f'buffer_store_dword v{V_QF}, v{V_T1}, {sr(R_OUT)}, 0 offen')
        a.label('L_fin_restore')
        a.e(f's_mov_b64 exec, s[{S_EX}:{S_EX+1}]')
        a.label('L_fin_skip')
        if self.stamps:
            self.stamp()
            a.e('s_waitcnt vmcnt(0) lgkmcnt(0)')
            a.e(f's_lshl_b32 s{S_T}, s2, 2')
            a.e(f's_add_u32 s{S_T}, s{S_T}, s{S_W}')
            a.e(f's_lshl_b32 s{S_T}, s{S_T}, 7')
            a.e(f's_add_u32 s{S_T}, s{S_T}, {WS_TS}')
            a.e(f'v_mov_b32 v{V_T1}, s{S_T}')
            a.e('s_mov_b64 exec, 1')
            for i in range(0, self.nstamp, 2):
                for k in range(4):
                    src = S_TS + 2*i + k
                    if i*2 + k < 2*self.nstamp:
                        a.e(f'v_mov_b32 v{V_QF+k}, s{src}')
                    else:
                        a.e(f'v_mov_b32 v{V_QF+k}, 0')
                a.e(f'buffer_store_dwordx4 {vr(V_QF)}, v{V_T1}, {sr(R_WS)}, 0 offen offset:{16*i//2*2//2*1 if False else 8*i}')
                a.e('s_nop 1')
            a.e('s_mov_b64 exec, -1')
            a.e(f's_lshl_b32 s{S_T}, s2, 2')
            a.e(f's_add_u32 s{S_T}, s{S_T}, s{S_W}')
            a.e(f's_lshl_b32 s{S_T}, s{S_T}, 8')
            a.e(f's_add_u32 s{S_T}, s{S_T}, {WS_TS + (1<<18)}')
            a.e(f'v_lshlrev_b32 v{V_T2}, 2, v{V_LANE}')
            a.e(f'v_add_u32 v{V_T2}, s{S_T}, v{V_T2}')
            a.e(f'buffer_store_dword v250, v{V_T2}, {sr(R_WS)}, 0 offen')
            a.e('s_mov_b64 exec, 1')
            a.e('s_getreg_b32 s98, hwreg(HW_REG_XCC_ID)')
            a.e('s_getreg_b32 s99, hwreg(HW_REG_HW_ID)')
            a.e(f'v_mov_b32 v{V_QF}, s98')
            a.e(f'v_mov_b32 v{V_QF+1}, s99')
            a.e(f'buffer_store_dwordx2 {vr(V_QF,2)}, v{V_T1}, {sr(R_WS)}, 0 offen offset:64')
            a.e('s_waitcnt vmcnt(0)')
        a.label('L_end')
        a.e('s_endpgm')

    def build(self):
        self.prologue()
        self.k_phase()
        self.midpoint()
        self.v_phase()
        self.tail()
        head = f'''; Kernarg layout (64 bytes, pointers only, base s[0:1]):
; @launch grid=(256,1,1) block=(256,1,1) lds={LDS_BYTES}
.amdgcn_target "amdgcn-amd-amdhsa--gfx950"
.text
.globl {KNAME}
.p2align 8
.type {KNAME},@function
{KNAME}:
'''
        tailtxt = f'''.section .rodata,"a"
.p2align 6
.amdhsa_kernel {KNAME}
  .amdhsa_next_free_vgpr 512
  .amdhsa_next_free_sgpr 102
  .amdhsa_accum_offset 256
  .amdhsa_group_segment_fixed_size 0
  .amdhsa_kernarg_size 64
  .amdhsa_user_sgpr_count 2
  .amdhsa_user_sgpr_kernarg_segment_ptr 1
  .amdhsa_system_sgpr_workgroup_id_x 1
.end_amdhsa_kernel
'''
        return head + self.a.text() + tailtxt

if __name__ == '__main__':
    ap = argparse.ArgumentParser()
    ap.add_argument('-o', default='/dev/stdout')
    ap.add_argument('--PD', type=int, default=8)
    ap.add_argument('--G', type=int, default=4)
    ap.add_argument('--LAG', type=int, default=14)
    ap.add_argument('--ninit', type=int, default=3)
    ap.add_argument('--stamps', action='store_true')
    ap.add_argument('--wflags', default='')
    ap.add_argument('--kvflags', default='nt')
    ap.add_argument('--dbg', default='')
    ap.add_argument('--ainit', type=int, default=0)
    ap.add_argument('--wpg', type=int, default=4)
    ap.add_argument('--kfirst', type=int, default=8)
    ap.add_argument('--kper', type=float, default=1.0)
    ap.add_argument('--wqflags', default=None)
    x = ap.parse_args()
    k = Kernel(PD=x.PD, G=x.G, LAG=x.LAG, stamps=x.stamps, wflags=x.wflags, kvflags=x.kvflags, ninit=x.ninit, dbg=x.dbg, ainit=x.ainit, wpg=x.wpg, kfirst=x.kfirst, kper=x.kper, wqflags=x.wqflags)
    open(x.o, 'w').write(k.build())
```

```python
import sys, argparse

KNAME = 'standalone__mha_block_cached__decode_kernel'

class Asm:
    def __init__(self):
        self.L = []
        self.vm = []
    def e(self, s):
        for ln in s.split('\n'):
            self.L.append('    ' + ln.strip())
    def label(self, s):
        self.L.append(s + ':')
    def c(self, s):
        self.L.append('    ; ' + s)
    def vmop(self, tag, s):
        if len(self.vm) >= 63:
            self.e('s_waitcnt vmcnt(62)')
            self.vm = self.vm[-62:]
        self.e(s)
        self.vm.append(tag)
    def vmwait(self, tag):
        if tag not in self.vm:
            return False
        i = self.vm.index(tag)
        n = len(self.vm) - 1 - i
        self.e(f's_waitcnt vmcnt({n})')
        self.vm = self.vm[i + 1:]
        return True
    def vmdrain(self):
        self.e('s_waitcnt vmcnt(0)')
        self.vm = []
    def text(self):
        return '\n'.join(self.L) + '\n'

S_W = 3
S_X, S_K, S_V, S_WQ, S_WO, S_OUT, S_DBG, S_WS = 4, 6, 8, 10, 12, 14, 16, 18
R_K, R_V, R_WQ, R_WO, R_X, R_WS, R_OUT = 20, 24, 28, 32, 36, 40, 44
S_H, S_B, S_SP, S_ROW = 48, 49, 50, 51
S_BASE, S_T, S_CNT, S_C = 52, 53, 54, 55
S_MT = 56
S_EX = 64
S_WG = 66
S_TS = 82
V_TID, V_LANE, V_OK, V_OV, V_OWQ, V_OWO = 0, 1, 2, 3, 4, 5
V_T0, V_LDS, V_MAX, V_L, V_SC, V_E, V_PB, V_T, V_T1, V_T2 = 6, 7, 8, 9, 10, 11, 12, 13, 14, 15
V_D0, V_D1 = 16, 20
V_MASK = 24
V_SEL = 28
V_BX = 36
V_XD = 44
V_BQ = 60
V_RING = 92
V_INIT = 124
V_QF = 220
V_Y = 124
V_FIN = 92
L_PART, L_BF, L_MAX, L_LSUM, L_FLAG, L_Y, L_SC = 0x0000, 0x1000, 0x1200, 0x1210, 0x1220, 0x1400, 0x4000
LDS_BYTES = 0xC000
WS_ML = 0x80000
WS_TS = 3 << 20

def vr(b, n=4):
    return f'v[{b}:{b+n-1}]'
def ar(b, n=4):
    return f'a[{b}:{b+n-1}]'
def sr(b, n=4):
    return f's[{b}:{b+n-1}]'

class Kernel:
    def __init__(self, PD=8, G=4, LAG=14, stamps=False, wflags='', kvflags='nt', ninit=3, dbg='', ainit=0, wpg=4, kfirst=8, kper=1.0, wqflags=None, kflags=None, vflags=None):
        self.kflags = kvflags if kflags is None else kflags
        self.vflags = kvflags if vflags is None else vflags
        self.dbg = dbg
        self.ainit, self.wpg, self.kfirst, self.kper = ainit, wpg, kfirst, kper
        self.wqflags = wflags if wqflags is None else wqflags
        self.PD, self.G, self.LAG, self.stamps = PD, G, LAG, stamps
        self.wflags, self.kvflags, self.ninit = wflags, kvflags, ninit
        self.a = Asm()
        self.nstamp = 0

    def stamp(self, pro=False):
        if self.stamps and (pro == ('pro' in self.dbg) or self.nstamp == 0) and self.nstamp < 8:
            r = S_TS + 2 * self.nstamp
            self.a.e(f's_memrealtime s[{r}:{r+1}]')
            self.nstamp += 1

    def tl(self):
        if self.stamps:
            a = self.a
            a.e('s_memrealtime s[98:99]')
            a.e('s_waitcnt lgkmcnt(0)')
            a.e('v_writelane_b32 v250, s98, m0')
            a.e('s_add_u32 m0, m0, 1')

    def blockoff(self, t):
        if self.G == 2: return t * 8192
        if self.G == 4: return (t >> 1) * 16384 + (t & 1) * 2048
        if self.G == 8: return t * 2048
    def waveshift(self):
        return {2: 11, 4: 12, 8: 13}[self.G]

    def kvload(self, kind, slot, dst, extra, base=S_BASE, tag=None):
        a = self.a
        t, j = slot >> 1, slot & 1
        off = extra + self.blockoff(t) + 256 * j
        hi, imm = off & ~0xFFF, off & 0xFFF
        srd, vo = (R_K, V_OK) if kind == 'K' else (R_V, V_OV)
        if base is None:
            if hi:
                a.e(f's_mov_b32 s{S_T}, {hi}')
                so = f's{S_T}'
            else:
                so = '0'
        elif hi:
            a.e(f's_add_u32 s{S_T}, s{base}, {hi}')
            so = f's{S_T}'
        else:
            so = f's{base}'
        fl = self.kflags if kind == 'K' else self.vflags
        a.vmop(tag, f'buffer_load_dwordx4 {dst}, v{vo}, {sr(srd)}, {so} offen offset:{imm} {fl}')

    def prologue(self):
        a = self.a
        a.e(f's_cmp_ge_u32 s2, 256')
        a.e('s_cbranch_scc1 L_end')
        a.e(f's_load_dwordx16 s[4:19], s[0:1], 0')
        self.stamp()
        a.e(f'v_lshrrev_b32 v{V_T0}, 6, v{V_TID}')
        a.e(f'v_and_b32 v{V_LANE}, 63, v{V_TID}')
        a.e(f'v_readfirstlane_b32 s{S_W}, v{V_T0}')
        a.c('workgroup id -> head (two heads per XCD under round-robin placement), batch, split')
        a.e(f's_and_b32 s{S_H}, s2, 7')
        a.e(f's_lshl_b32 s{S_H}, s{S_H}, 1')
        a.e(f's_bfe_u32 s{S_T}, s2, 0x10003')
        a.e(f's_add_u32 s{S_H}, s{S_H}, s{S_T}')
        a.e(f's_bfe_u32 s{S_SP}, s2, 0x20004')
        a.e(f's_lshr_b32 s{S_B}, s2, 6')
        a.e(f's_lshl_b32 s{S_ROW}, s{S_B}, 6')
        a.e(f's_lshl_b32 s{S_T}, s{S_H}, 2')
        a.e(f's_add_u32 s{S_ROW}, s{S_ROW}, s{S_T}')
        a.e(f's_add_u32 s{S_ROW}, s{S_ROW}, s{S_SP}')
        a.e(f's_mov_b32 s{S_C}, 0x3db8aa3b')
        if self.stamps:
            a.e('s_mov_b32 m0, 0')
        g, m, c, kk = V_T, V_T1, V_T2, V_E
        a.e(f'v_lshrrev_b32 v{g}, 4, v{V_LANE}')
        a.e(f'v_and_b32 v{m}, 15, v{V_LANE}')
        a.e(f'v_and_b32 v{c}, 3, v{V_LANE}')
        a.e(f'v_bfe_u32 v{kk}, v{V_LANE}, 2, 2')
        a.e(f'v_lshlrev_b32 v{V_OK}, 9, v{kk}')
        a.e(f'v_lshl_add_u32 v{V_OK}, v{g}, 6, v{V_OK}')
        a.e(f'v_lshl_add_u32 v{V_OK}, v{c}, 4, v{V_OK}')
        a.e(f'v_lshlrev_b32 v{V_OV}, 9, v{g}')
        a.e(f'v_lshl_add_u32 v{V_OV}, v{m}, 4, v{V_OV}')
        a.e(f's_lshl_b32 s{S_T}, s{S_W}, {self.waveshift()}')
        a.e(f'v_add_u32 v{V_OK}, s{S_T}, v{V_OK}')
        a.e(f'v_add_u32 v{V_OV}, s{S_T}, v{V_OV}')
        a.e(f's_mul_i32 s{S_T}, s{S_W}, {112*8192}')
        a.e(f'v_mul_u32_u24 v{V_OWQ}, {28*8192}, v{g}')
        a.e(f'v_lshl_add_u32 v{V_OWQ}, v{m}, 4, v{V_OWQ}')
        a.e(f'v_add_u32 v{V_OWQ}, s{S_T}, v{V_OWQ}')
        a.e(f's_mul_i32 s{S_T}, s{S_W}, {64*896}')
        a.e(f'v_mul_u32_u24 v{V_OWO}, {16*896}, v{g}')
        a.e(f'v_lshl_add_u32 v{V_OWO}, v{m}, 4, v{V_OWO}')
        a.e(f'v_add_u32 v{V_OWO}, s{S_T}, v{V_OWO}')
        a.e(f's_mul_i32 s{S_T}, s{S_W}, 224')
        a.e(f's_mul_i32 s{S_CNT}, s{S_B}, 896')
        a.e(f's_add_u32 s{S_T}, s{S_T}, s{S_CNT}')
        a.e(f'v_mul_u32_u24 v{V_T0}, 56, v{g}')
        a.e(f'v_add_u32 v{V_T0}, s{S_T}, v{V_T0}')
        a.e('s_waitcnt lgkmcnt(0)')
        a.e(f's_lshl_b32 s{S_T}, s{S_B}, 4')
        a.e(f's_add_u32 s{S_T}, s{S_T}, s{S_H}')
        a.e(f's_lshl_b32 s{S_T}, s{S_T}, 2')
        a.e(f's_add_u32 s{S_T}, s{S_T}, s{S_SP}')
        a.e(f's_lshl_b32 s{S_CNT}, s{S_T}, 20')
        for (p, r) in ((S_K, R_K), (S_V, R_V)):
            a.e(f's_add_u32 s{r}, s{p}, s{S_CNT}')
            a.e(f's_addc_u32 s{r+1}, s{p+1}, 0')
            a.e(f's_mov_b32 s{r+2}, 0x100000')
            a.e(f's_mov_b32 s{r+3}, 0x20000')
        a.e(f's_mov_b32 s{R_X}, s{S_X}')
        a.e(f's_mov_b32 s{R_X+1}, s{S_X+1}')
        a.e(f's_mov_b32 s{R_X+2}, 3584')
        a.e(f's_mov_b32 s{R_X+3}, 0x20000')
        a.e(f's_lshl_b32 s{S_T}, s{S_H}, 9')
        a.e(f's_add_u32 s{R_WQ}, s{S_WQ}, s{S_T}')
        a.e(f's_addc_u32 s{R_WQ+1}, s{S_WQ+1}, 0')
        a.e(f's_sub_u32 s{R_WQ+2}, {448*8192}, s{S_T}')
        a.e(f's_mov_b32 s{R_WQ+3}, 0x20000')
        a.e(f's_mul_i32 s{S_T}, s{S_H}, {256*896}')
        a.e(f's_add_u32 s{R_WO}, s{S_WO}, s{S_T}')
        a.e(f's_addc_u32 s{R_WO+1}, s{S_WO+1}, 0')
        a.e(f's_mov_b32 s{R_WO+2}, {256*896}')
        a.e(f's_mov_b32 s{R_WO+3}, 0x20000')
        for i, (n, nm) in enumerate(((4, 'x4'), (4, 'x4'), (4, 'x4'), (2, 'x2'))):
            a.vmop(('x', i), f'buffer_load_dword{nm} {vr(V_XD+4*i, n)}, v{V_T0}, {sr(R_X)}, 0 offen offset:{16*i}')
        a.e(f's_mov_b32 s{R_WS}, s{S_WS}')
        a.e(f's_mov_b32 s{R_WS+1}, s{S_WS+1}')
        a.e(f's_mov_b32 s{R_WS+2}, 0x400000')
        a.e(f's_mov_b32 s{R_WS+3}, 0x20000')
        a.e(f's_mov_b32 s{R_OUT}, s{S_OUT}')
        a.e(f's_mov_b32 s{R_OUT+1}, s{S_OUT+1}')
        a.e(f's_mov_b32 s{R_OUT+2}, 3584')
        a.e(f's_mov_b32 s{R_OUT+3}, 0x20000')

        ninit = self.ninit
        ntot = ninit + self.ainit
        def initreg(gi, s):
            if gi < ninit: return vr(V_INIT + 32 * gi + 4 * s)
            return ar(224 + 4 * s)
        self.initreg = initreg
        kq = [('ring', s) for s in range(8)] + [(('init', gi), s) for gi in range(ntot) for s in range(8)]
        def k_issue(n):
            for _ in range(n):
                if not kq: return
                grp, s = kq.pop(0)
                if grp == 'ring':
                    self.kvload('K', s, vr(V_RING + 4 * s), ntot * 32768, base=None, tag=('ring', s))
                else:
                    gi = grp[1]
                    self.kvload('K', s, initreg(gi, s), gi * 32768, base=None, tag=('init', gi, s))
        def wq_issue(u):
            a.e(f's_mov_b32 s{S_T}, {u*8192}')
            for j in range(2):
                a.vmop(('wq', u, j), f'buffer_load_dwordx4 {ar(8*u+4*j)}, v{V_OWQ}, {sr(R_WQ)}, s{S_T} offen offset:{256*j} {self.wqflags}')
        def consume(u):
            if u == 0:
                a.vmwait(('x', 3))
            st = V_BX + 4 * (u & 1)
            xd = V_XD + (u >> 1)
            for jj in range(4):
                a.e(f'v_perm_b32 v{st+jj}, v{xd}, v{xd}, v{V_SEL + 2*jj + (u & 1)}')
            a.vmwait(('wq', u, 1))
            if u in (0, 7, 14, 21, 27): self.stamp(True)
            a.e('s_nop 1')
            for j in range(2):
                d = V_D0 if j == 0 else V_D1
                cacc = '0' if u == 0 else vr(d)
                a.e(f'v_mfma_f32_16x16x32_bf16 {vr(d)}, {ar(8*u+4*j)}, {vr(st)}, {cacc}')
        k_issue(self.kfirst)
        acc = 0.0
        done = 0
        for u in range(28):
            wq_issue(u)
            acc += self.kper
            while acc >= 1.0:
                k_issue(1); acc -= 1.0
            if u == 1:
                self.lane_consts()
            if u >= self.LAG:
                consume(done); done += 1
        k_issue(64)
        while done < 28:
            consume(done); done += 1
        self.stamp()
        self.stamp(True)
        n8 = V_T1
        a.e(f'v_lshrrev_b32 v{V_T}, 4, v{V_LANE}')
        a.e(f'v_lshlrev_b32 v{V_T}, 7, v{V_T}')
        a.e(f'v_lshl_add_u32 v{V_T}, v{V_T1}, 2, v{V_T}')
        a.e(f's_lshl_b32 s{S_T}, s{S_W}, 10')
        a.e(f'v_add_u32 v{V_QF}, s{S_T}, v{V_T}')
        a.e(f's_mov_b32 exec_lo, 0x00ff00ff\ns_mov_b32 exec_hi, 0x00ff00ff')
        a.e('s_nop 7')
        for j in range(2):
            for r in range(4):
                d = (V_D0 if j == 0 else V_D1) + r
                a.e(f'ds_write_b32 v{V_QF}, v{d} offset:{L_PART + j*512 + r*32}')
        a.e('s_mov_b64 exec, -1')
        a.e('s_waitcnt lgkmcnt(0)\ns_barrier')
        a.e(f'v_lshlrev_b32 v{V_T}, 2, v{V_TID}')
        for w in range(4):
            a.e(f'ds_read_b32 v{V_QF+w}, v{V_T} offset:{L_PART + w*1024}')
        a.e(f'v_lshlrev_b32 v{V_T2}, 1, v{V_TID}')
        a.e('s_waitcnt lgkmcnt(0)')
        a.e(f'v_add_f32 v{V_QF}, v{V_QF}, v{V_QF+1}')
        a.e(f'v_add_f32 v{V_QF+2}, v{V_QF+2}, v{V_QF+3}')
        a.e(f'v_add_f32 v{V_QF}, v{V_QF}, v{V_QF+2}')
        a.e(f'v_cvt_pk_bf16_f32 v{V_QF}, v{V_QF}, v{V_QF}')
        a.e(f'ds_write_b16 v{V_T2}, v{V_QF} offset:{L_BF}')
        a.e(f'v_lshrrev_b32 v{V_T}, 4, v{V_LANE}')
        a.e(f'v_lshlrev_b32 v{V_T}, 6, v{V_T}')
        a.e(f'v_and_b32 v{V_T2}, 3, v{V_LANE}')
        a.e(f'v_lshl_add_u32 v{V_T}, v{V_T2}, 4, v{V_T}')
        a.e('s_waitcnt lgkmcnt(0)\ns_barrier')
        for j in range(2):
            a.e(f'ds_read_b128 {vr(V_QF+4*j)}, v{V_T} offset:{L_BF + 256*j}')
        for t in range(4):
            mk = 0x000F000F << (4 * t)
            a.e(f's_mov_b32 s{S_MT+2*t}, {mk:#x}\ns_mov_b32 s{S_MT+2*t+1}, {mk:#x}')
        a.e(f's_lshl_b32 s{S_T}, s{S_W}, 13')
        a.e(f's_add_u32 s{S_T}, s{S_T}, {L_SC}')
        a.e(f'v_lshlrev_b32 v{V_LDS}, 2, v{V_LANE}')
        a.e(f'v_add_u32 v{V_LDS}, s{S_T}, v{V_LDS}')
        a.e(f'v_mov_b32 v{V_MAX}, 0xff800000')
        a.e('s_waitcnt lgkmcnt(0)')
        for t in range(4):
            for j in range(2):
                for r in range(4):
                    a.e(f'v_cndmask_b32 v{V_BQ + 4*(2*t+j) + r}, 0, v{V_QF+4*j+r}, s[{S_MT+2*t}:{S_MT+2*t+1}]')
        a.e('s_nop 1')
        self.stamp()
        self.stamp(True)

    def lane_consts(self):
        a = self.a
        n = V_T1
        a.e(f'v_and_b32 v{V_T2}, 1, v{n}')
        a.e(f'v_cmp_eq_u32 vcc, 1, v{V_T2}')
        a.e(f'v_mov_b32 v{V_E}, 0x0c0c0100\nv_mov_b32 v{V_PB}, 0x01000c0c')
        a.e(f'v_cndmask_b32 v{V_E}, v{V_E}, v{V_PB}, vcc')
        a.e(f'v_mov_b32 v{V_PB}, 0x0c0c0302\nv_mov_b32 v{V_SC}, 0x03020c0c')
        a.e(f'v_cndmask_b32 v{V_PB}, v{V_PB}, v{V_SC}, vcc')
        a.e(f'v_mov_b32 v{V_SC}, 0x0000ffff\nv_mov_b32 v{V_L}, 0xffff0000')
        a.e(f'v_cndmask_b32 v{V_SC}, v{V_SC}, v{V_L}, vcc')
        a.e(f'v_lshrrev_b32 v{V_T2}, 1, v{n}')
        a.e(f'v_mov_b32 v{V_L}, 0x0c0c0c0c')
        for jj in range(4):
            a.e(f'v_cmp_eq_u32 vcc, {jj}, v{V_T2}')
            a.e('s_nop 1')
            a.e(f'v_cndmask_b32 v{V_SEL+2*jj}, v{V_L}, v{V_E}, vcc')
            a.e(f'v_cndmask_b32 v{V_SEL+2*jj+1}, v{V_L}, v{V_PB}, vcc')
            a.e(f'v_cndmask_b32 v{V_MASK+jj}, 0, v{V_SC}, vcc')
        a.e(f'v_mov_b32 v{V_L}, 0')

    def score_finish(self, off):
        a = self.a
        a.e('s_nop 7')
        dpp = 'row_mask:0xf bank_mask:0xf'
        a.e(f'v_mov_b32_dpp v{V_T}, v{V_D0} quad_perm:[0,0,0,0] {dpp}')
        a.e(f'v_mov_b32_dpp v{V_T1}, v{V_D0+2} quad_perm:[2,2,2,2] {dpp}')
        a.e('s_nop 0')
        a.e(f'v_add_f32_dpp v{V_T}, v{V_D0+1}, v{V_T} quad_perm:[1,1,1,1] {dpp}')
        a.e(f'v_add_f32_dpp v{V_T1}, v{V_D0+3}, v{V_T1} quad_perm:[3,3,3,3] {dpp}')
        a.e(f'v_add_f32 v{V_T}, v{V_T}, v{V_T1}')
        a.e(f'ds_write_b32 v{V_LDS}, v{V_T} offset:{off}')
        a.e(f'v_max_f32 v{V_MAX}, v{V_MAX}, v{V_T}')

    def wo_issue(self):
        if not self.woq or 'nowo' in self.dbg: return
        z = self.woq.pop(0)
        u, cb = z >> 2, z & 3
        a = self.a
        a.e(f's_mov_b32 s{S_T}, {u*896}')
        a.vmop(('wo', z), f'buffer_load_dwordx4 {ar(4*z)}, v{V_OWO}, {sr(R_WO)}, s{S_T} offen offset:{224*cb} {self.wflags}')

    def k_group(self, src, nxt, scoff, first_ring=False, nwo=0):
        a = self.a
        PD = self.PD
        wo_at = {0: [], 1: [3], 2: [1, 5], 3: [1, 4, 6], 4: [1, 3, 5, 7], 8: list(range(8))}[nwo]
        for s in range(8):
            a.vmwait(src['tag'](s))
            cacc = '0' if s == 0 else vr(V_D0)
            a.e(f'v_mfma_f32_16x16x32_bf16 {vr(V_D0)}, {src["reg"](s)}, {vr(V_BQ + 4*s)}, {cacc}')
            if nxt is not None:
                n = s + PD
                if n < 8:
                    if not first_ring:
                        self.kvload('K', n, vr(V_RING + 4*n), 0, tag=('ring', n))
                elif nxt == 'K':
                    self.kvload('K', n - 8, vr(V_RING + 4*(n-8)), 32768, tag=('ring', n - 8))
                else:
                    self.kvload('V', n - 8, vr(V_RING + 4*(n-8)), 0, base=None, tag=('ring', n - 8))
            if s in wo_at:
                self.wo_issue()
        self.score_finish(scoff)
        self.tl()

    def k_phase(self):
        a = self.a
        ntot = self.ninit + self.ainit
        self.woq = list(range(64))
        ring = {'reg': lambda s: vr(V_RING + 4*s), 'tag': lambda s: ('ring', s)}
        a.e(f's_mov_b32 s{S_BASE}, {ntot*32768}')
        a.e(f'v_mov_b32 v{V_PB}, v{V_LDS}')
        self.k_group(ring, 'K', ntot * 256, first_ring=True)
        a.e(f's_add_u32 s{S_BASE}, s{S_BASE}, 32768')
        for gi in range(ntot):
            self.k_group({'reg': (lambda s, gi=gi: self.initreg(gi, s)), 'tag': (lambda s, gi=gi: ('init', gi, s))}, None, gi * 256)
        g = ntot + 1
        while self.woq and 'nowo' not in self.dbg:
            assert g <= 30
            self.k_group(ring, 'K', g * 256, nwo=self.wpg)
            a.e(f's_add_u32 s{S_BASE}, s{S_BASE}, 32768')
            g += 1
        while any(t[0] != 'ring' for t in a.vm):
            assert g <= 30
            self.k_group(ring, 'K', g * 256)
            a.e(f's_add_u32 s{S_BASE}, s{S_BASE}, 32768')
            g += 1
        a.e(f'v_add_u32 v{V_LDS}, {g*256}, v{V_LDS}')
        if g <= 30:
            a.e(f's_mov_b32 s{S_CNT}, {31 - g}')
            entry = list(a.vm)
            a.label('L_kloop')
            self.k_group(ring, 'K', 0)
            assert a.vm == entry, (a.vm, entry)
            a.e(f'v_add_u32 v{V_LDS}, 256, v{V_LDS}')
            a.e(f's_add_u32 s{S_BASE}, s{S_BASE}, 32768')
            a.e(f's_sub_u32 s{S_CNT}, s{S_CNT}, 1')
            a.e(f's_cmp_lg_u32 s{S_CNT}, 0')
            a.e('s_cbranch_scc1 L_kloop')
        self.k_group(ring, 'V', 0)
        a.e(f'v_mov_b32 v{V_LDS}, v{V_PB}')
        self.stamp()

    def midpoint(self):
        a = self.a
        v = V_MAX
        for ctl in ('row_ror:4 row_mask:0xf', 'row_ror:8 row_mask:0xf', 'row_bcast:15 row_mask:0xa', 'row_bcast:31 row_mask:0xc'):
            a.e('s_nop 1')
            a.e(f'v_max_f32_dpp v{v}, v{v}, v{v} {ctl} bank_mask:0xf')
        a.e(f's_lshl_b32 s{S_T}, s{S_W}, 2')
        a.e(f'v_mov_b32 v{V_T}, s{S_T}')
        a.e('s_mov_b32 exec_lo, 0\ns_mov_b32 exec_hi, 0x80000000')
        a.e(f'ds_write_b32 v{V_T}, v{v} offset:{L_MAX}')
        a.e('s_mov_b64 exec, -1')
        a.e(f'v_mov_b32 v{V_T}, 0')
        a.e('s_waitcnt lgkmcnt(0)\ns_barrier')
        a.e(f'ds_read_b128 {vr(V_QF)}, v{V_T} offset:{L_MAX}')
        a.e(f'ds_read_b32 v{V_SC}, v{V_LDS}')
        a.e('s_waitcnt lgkmcnt(0)')
        a.e(f'v_max3_f32 v{V_MAX}, v{V_QF}, v{V_QF+1}, v{V_QF+2}')
        a.e(f'v_max_f32 v{V_MAX}, v{V_MAX}, v{V_QF+3}')
        a.e(f'v_mul_f32 v{V_T2}, s{S_C}, v{V_MAX}')
        a.e(f'v_sub_f32 v{V_T2}, 0, v{V_T2}')

    def v_group(self, last):
        a = self.a
        PD = self.PD
        a.e('s_waitcnt lgkmcnt(0)')
        a.e(f'v_fma_f32 v{V_E}, v{V_SC}, s{S_C}, v{V_T2}')
        if not last:
            a.e(f'ds_read_b32 v{V_SC}, v{V_LDS} offset:256')
        a.e(f'v_exp_f32 v{V_E}, v{V_E}')
        a.e('s_nop 0')
        a.e(f'v_cvt_pk_bf16_f32 v{V_PB}, v{V_E}, v{V_E}')
        a.e(f'v_add_f32 v{V_L}, v{V_L}, v{V_E}')
        a.e('s_nop 0')
        def build(t):
            st = V_BX + 4 * (t & 1)
            for jj in range(4):
                a.e(f'v_and_b32_dpp v{st+jj}, v{V_PB}, v{V_MASK+jj} row_newbcast:{4*t} row_mask:0xf bank_mask:0xf')
        build(0)
        a.e('s_nop 0')
        for t in range(4):
            st = V_BX + 4 * (t & 1)
            for j in range(2):
                s = 2 * t + j
                a.vmwait(('ring', s))
                d = V_D0 if j == 0 else V_D1
                a.e(f'v_mfma_f32_16x16x32_bf16 {vr(d)}, {vr(V_RING + 4*s)}, {vr(st)}, {vr(d)}')
                n = s + PD
                if n < 8:
                    self.kvload('V', n, vr(V_RING + 4*n), 0, tag=('ring', n))
                elif not last:
                    self.kvload('V', n - 8, vr(V_RING + 4*(n-8)), 32768, tag=('ring', n - 8))
                if j == 0 and t < 3:
                    build(t + 1)
        self.tl()

    def v_phase(self):
        a = self.a
        a.e(f's_mov_b32 s{S_BASE}, 0')
        a.e(f's_mov_b32 s{S_CNT}, 31')
        for r in range(8):
            a.e(f'v_mov_b32 v{V_D0+r}, 0')
        entry = list(a.vm)
        a.label('L_vloop')
        self.v_group(False)
        assert a.vm == entry, (a.vm, entry)
        a.e(f'v_add_u32 v{V_LDS}, 256, v{V_LDS}')
        a.e(f's_add_u32 s{S_BASE}, s{S_BASE}, 32768')
        a.e(f's_sub_u32 s{S_CNT}, s{S_CNT}, 1')
        a.e(f's_cmp_lg_u32 s{S_CNT}, 0')
        a.e('s_cbranch_scc1 L_vloop')
        self.v_group(True)
        self.stamp()

    def tail(self):
        a = self.a
        v = V_L
        for ctl in ('row_ror:4 row_mask:0xf', 'row_ror:8 row_mask:0xf', 'row_bcast:15 row_mask:0xa', 'row_bcast:31 row_mask:0xc'):
            a.e('s_nop 1')
            a.e(f'v_add_f32_dpp v{v}, v{v}, v{v} {ctl} bank_mask:0xf')
        a.e(f's_lshl_b32 s{S_T}, s{S_W}, 2')
        a.e(f'v_mov_b32 v{V_T}, s{S_T}')
        a.e('s_mov_b32 exec_lo, 0\ns_mov_b32 exec_hi, 0x80000000')
        a.e(f'ds_write_b32 v{V_T}, v{v} offset:{L_LSUM}')
        a.e('s_mov_b64 exec, -1')
        a.e(f'v_lshrrev_b32 v{V_T}, 4, v{V_LANE}')
        a.e(f'v_lshlrev_b32 v{V_T}, 7, v{V_T}')
        a.e(f'v_and_b32 v{V_T1}, 15, v{V_LANE}')
        a.e(f'v_lshl_add_u32 v{V_T}, v{V_T1}, 2, v{V_T}')
        a.e(f's_lshl_b32 s{S_T}, s{S_W}, 10')
        a.e(f'v_add_u32 v{V_QF}, s{S_T}, v{V_T}')
        a.e(f's_mov_b32 exec_lo, 0x00ff00ff\ns_mov_b32 exec_hi, 0x00ff00ff')
        for j in range(2):
            for r in range(4):
                d = (V_D0 if j == 0 else V_D1) + r
                a.e(f'ds_write_b32 v{V_QF}, v{d} offset:{L_PART + j*512 + r*32}')
        a.e('s_mov_b64 exec, -1')
        a.e('s_waitcnt lgkmcnt(0)\ns_barrier')
        a.e(f'v_lshlrev_b32 v{V_E}, 2, v{V_TID}')
        for w in range(4):
            a.e(f'ds_read_b32 v{V_QF+w}, v{V_E} offset:{L_PART + w*1024}')
        a.e(f'v_lshlrev_b32 v{V_SC}, 1, v{V_TID}')
        a.e(f'v_lshrrev_b32 v{V_PB}, 4, v{V_LANE}')
        a.e(f'v_lshlrev_b32 v{V_PB}, 5, v{V_PB}')
        a.e(f's_lshl_b32 s{S_T}, s{S_W}, 7')
        a.e(f'v_add_u32 v{V_PB}, s{S_T}, v{V_PB}')
        a.e('s_waitcnt lgkmcnt(0)')
        a.e(f'v_add_f32 v{V_QF}, v{V_QF}, v{V_QF+1}')
        a.e(f'v_add_f32 v{V_QF+2}, v{V_QF+2}, v{V_QF+3}')
        a.e(f'v_add_f32 v{V_QF}, v{V_QF}, v{V_QF+2}')
        a.e(f'v_cvt_pk_bf16_f32 v{V_QF}, v{V_QF}, v{V_QF}')
        a.e(f'ds_write_b16 v{V_SC}, v{V_QF} offset:{L_BF}')
        a.e('s_waitcnt lgkmcnt(0)')
        for i in range(2):
            a.e(f'ds_read_b128 {vr(V_XD+4*i)}, v{V_PB} offset:{L_BF + 16*i}')
        a.e('s_waitcnt lgkmcnt(0)')
        def build(u):
            st = V_BX + 4 * (u & 1)
            xd = V_XD + (u >> 1)
            for jj in range(4):
                a.e(f'v_perm_b32 v{st+jj}, v{xd}, v{xd}, v{V_SEL + 2*jj + (u & 1)}')
        build(0)
        a.e('s_nop 1')
        for u in range(16):
            st = V_BX + 4 * (u & 1)
            for cb in range(4):
                y = V_Y + 4 * cb
                cacc = '0' if u == 0 else vr(y)
                a.e(f'v_mfma_f32_16x16x32_bf16 {vr(y)}, {ar(4*(4*u+cb))}, {vr(st)}, {cacc}')
                if cb == 0 and u < 15:
                    build(u + 1)
        a.e(f's_lshl_b32 s{S_T}, s{S_W}, 11')
        a.e(f'v_add_u32 v{V_QF}, s{S_T}, v{V_T}')
        a.e(f's_mov_b32 exec_lo, 0x00ff00ff\ns_mov_b32 exec_hi, 0x00ff00ff')
        a.e('s_nop 7')
        for r in range(4):
            if r == 2:
                a.e('s_mov_b32 exec_hi, 0x000000ff')
            for cb in range(4):
                a.e(f'ds_write_b32 v{V_QF}, v{V_Y+4*cb+r} offset:{L_Y + cb*448 + r*32}')
        a.e('s_mov_b64 exec, -1')
        a.e('s_waitcnt lgkmcnt(0)\ns_barrier')
        self.stamp()
        a.e(f's_cmp_lg_u32 s{S_W}, 0')
        a.e('s_cbranch_scc1 L_pubdone')
        a.e(f'v_lshlrev_b32 v{V_T}, 4, v{V_LANE}')
        for i in range(2):
            for w in range(4):
                a.e(f'ds_read_b128 {vr(V_FIN + 16*i + 4*w)}, v{V_T} offset:{L_Y + w*2048 + i*1024}')
        a.e(f'v_mov_b32 v{V_T1}, 0')
        a.e(f'ds_read_b128 {vr(V_QF)}, v{V_T1} offset:{L_LSUM}')
        a.e(f's_lshl_b32 s{S_T}, s{S_ROW}, 11')
        a.e(f'v_add_u32 v{V_T}, s{S_T}, v{V_T}')
        a.e(f's_lshl_b32 s{S_T}, s{S_ROW}, 3')
        a.e(f's_add_u32 s{S_T}, s{S_T}, {WS_ML}')
        a.e('s_waitcnt lgkmcnt(0)')
        for i in range(2):
            b = V_FIN + 16 * i
            for r in range(4):
                a.e(f'v_add_f32 v{b+r}, v{b+r}, v{b+4+r}')
                a.e(f'v_add_f32 v{b+8+r}, v{b+8+r}, v{b+12+r}')
            for r in range(4):
                a.e(f'v_add_f32 v{b+r}, v{b+r}, v{b+8+r}')
            a.e(f'buffer_store_dwordx4 {vr(b)}, v{V_T}, {sr(R_WS)}, 0 offen offset:{1024*i} sc1')
        a.e(f'v_add_f32 v{V_QF}, v{V_QF}, v{V_QF+1}')
        a.e(f'v_add_f32 v{V_QF+2}, v{V_QF+2}, v{V_QF+3}')
        a.e(f'v_add_f32 v{V_QF+1}, v{V_QF}, v{V_QF+2}')
        a.e(f'v_mov_b32 v{V_QF}, v{V_MAX}')
        a.e(f'v_mov_b32 v{V_T1}, s{S_T}')
        a.e('s_mov_b64 exec, 1')
        a.e(f'buffer_store_dwordx2 {vr(V_QF, 2)}, v{V_T1}, {sr(R_WS)}, 0 offen sc1')
        a.e('s_waitcnt vmcnt(0)')
        a.e(f's_lshl_b32 s{S_T}, s{S_B}, 2')
        a.e(f'v_mov_b32 v{V_T1}, s{S_T}')
        a.e(f'v_mov_b32 v{V_T2}, 1')
        a.e(f'global_atomic_add v{V_T2}, v{V_T1}, v{V_T2}, s[{S_DBG}:{S_DBG+1}] sc0')
        a.e(f'v_mov_b32 v{V_T1}, 0')
        a.e('s_waitcnt vmcnt(0)')
        a.e(f'ds_write_b32 v{V_T1}, v{V_T2} offset:{L_FLAG}')
        a.e('s_mov_b64 exec, -1')
        a.label('L_pubdone')
        a.e('s_waitcnt lgkmcnt(0)\ns_barrier')
        a.e(f'v_mov_b32 v{V_T1}, 0')
        a.e(f'ds_read_b32 v{V_T2}, v{V_T1} offset:{L_FLAG}')
        a.e('s_waitcnt lgkmcnt(0)')
        a.e(f'v_readfirstlane_b32 s{S_T}, v{V_T2}')
        self.stamp()
        a.e('s_nop 3')
        a.e(f's_cmp_lg_u32 s{S_T}, 63')
        a.e('s_cbranch_scc1 L_fin_skip')
        a.e(f's_lshl_b32 s{S_T}, s{S_B}, 6')
        a.e(f's_lshl_b32 s{S_CNT}, s{S_W}, 4')
        a.e(f's_add_u32 s{S_CNT}, s{S_CNT}, s{S_T}')
        a.e(f'v_and_b32 v{V_T1}, 15, v{V_LANE}')
        a.e(f'v_add_u32 v{V_T1}, s{S_CNT}, v{V_T1}')
        a.e(f'v_lshlrev_b32 v{V_T1}, 3, v{V_T1}')
        a.e(f'v_add_u32 v{V_T1}, {WS_ML}, v{V_T1}')
        a.vm = []
        a.vmop('ml', f'buffer_load_dwordx2 {vr(V_QF, 2)}, v{V_T1}, {sr(R_WS)}, 0 offen sc1')
        a.e(f's_lshl_b32 s{S_CNT}, s{S_CNT}, 11')
        a.e(f'v_lshlrev_b32 v{V_T}, 4, v{V_LANE}')
        a.e(f'v_add_u32 v{V_T}, s{S_CNT}, v{V_T}')
        for j in range(16):
            a.e(f's_mov_b32 s{S_T}, {j*2048}')
            for i in range(2):
                a.vmop(('y', j, i), f'buffer_load_dwordx4 {vr(V_FIN + 8*j + 4*i)}, v{V_T}, {sr(R_WS)}, s{S_T} offen offset:{1024*i} sc1')
        a.vmwait('ml')
        m, l, M, e = V_QF, V_QF + 1, V_QF + 2, V_QF + 3
        a.e(f'v_max_f32_dpp v{M}, v{m}, v{m} quad_perm:[1,0,3,2] row_mask:0xf bank_mask:0xf')
        a.e('s_nop 1')
        a.e(f'v_max_f32_dpp v{M}, v{M}, v{M} quad_perm:[2,3,0,1] row_mask:0xf bank_mask:0xf')
        a.e(f'v_sub_f32 v{e}, v{m}, v{M}')
        a.e(f'v_mul_f32 v{e}, s{S_C}, v{e}')
        a.e(f'v_exp_f32 v{e}, v{e}')
        a.e('s_nop 0')
        a.e(f'v_mul_f32 v{l}, v{l}, v{e}')
        a.e('s_nop 1')
        a.e(f'v_add_f32_dpp v{l}, v{l}, v{l} quad_perm:[1,0,3,2] row_mask:0xf bank_mask:0xf')
        a.e('s_nop 1')
        a.e(f'v_add_f32_dpp v{l}, v{l}, v{l} quad_perm:[2,3,0,1] row_mask:0xf bank_mask:0xf')
        a.e(f'v_rcp_f32 v{l}, v{l}')
        a.e('s_nop 0')
        a.e(f'v_mul_f32 v{e}, v{e}, v{l}')
        a.e('s_nop 0')
        for j in range(16):
            a.e(f'v_readlane_b32 s{S_WG+j}, v{e}, {j}')
        for r in range(8):
            a.e(f'v_mov_b32 v{V_D0+r}, 0')
        for j in range(16):
            a.vmwait(('y', j, 1))
            for i in range(2):
                for r in range(4):
                    a.e(f'v_fmac_f32 v{V_D0+4*i+r}, s{S_WG+j}, v{V_FIN+8*j+4*i+r}')
        a.e(f's_lshl_b32 s{S_T}, s{S_W}, 11')
        a.e(f'v_lshlrev_b32 v{V_T}, 4, v{V_LANE}')
        a.e(f'v_add_u32 v{V_T}, s{S_T}, v{V_T}')
        a.e(f'ds_write_b128 v{V_T}, {vr(V_D0)} offset:{L_Y}')
        a.e(f'ds_write_b128 v{V_T}, {vr(V_D1)} offset:{L_Y + 1024}')
        a.e('s_waitcnt lgkmcnt(0)\ns_barrier')
        a.e(f'v_lshlrev_b32 v{V_T}, 3, v{V_TID}')
        for w in range(4):
            a.e(f'ds_read_b64 {vr(V_QF+2*w, 2)}, v{V_T} offset:{L_Y + w*2048}')
        a.e(f's_mul_i32 s{S_T}, s{S_B}, 896')
        a.e(f'v_lshlrev_b32 v{V_T1}, 2, v{V_TID}')
        a.e(f'v_add_u32 v{V_T1}, s{S_T}, v{V_T1}')
        a.e(f'v_cmp_gt_u32 vcc, 224, v{V_TID}')
        a.e('s_waitcnt lgkmcnt(0)')
        for r in range(2):
            a.e(f'v_add_f32 v{V_QF+r}, v{V_QF+r}, v{V_QF+2+r}')
            a.e(f'v_add_f32 v{V_QF+4+r}, v{V_QF+4+r}, v{V_QF+6+r}')
            a.e(f'v_add_f32 v{V_QF+r}, v{V_QF+r}, v{V_QF+4+r}')
        a.e(f'v_cvt_pk_bf16_f32 v{V_QF}, v{V_QF}, v{V_QF+1}')
        a.e(f's_and_saveexec_b64 s[{S_EX}:{S_EX+1}], vcc')
        a.e('s_cbranch_execz L_fin_restore')
        a.e(f'buffer_store_dword v{V_QF}, v{V_T1}, {sr(R_OUT)}, 0 offen')
        a.label('L_fin_restore')
        a.e(f's_mov_b64 exec, s[{S_EX}:{S_EX+1}]')
        a.label('L_fin_skip')
        if self.stamps:
            self.stamp()
            a.e('s_waitcnt vmcnt(0) lgkmcnt(0)')
            a.e(f's_lshl_b32 s{S_T}, s2, 2')
            a.e(f's_add_u32 s{S_T}, s{S_T}, s{S_W}')
            a.e(f's_lshl_b32 s{S_T}, s{S_T}, 7')
            a.e(f's_add_u32 s{S_T}, s{S_T}, {WS_TS}')
            a.e(f'v_mov_b32 v{V_T1}, s{S_T}')
            a.e('s_mov_b64 exec, 1')
            for i in range(0, self.nstamp, 2):
                for k in range(4):
                    src = S_TS + 2*i + k
                    if i*2 + k < 2*self.nstamp:
                        a.e(f'v_mov_b32 v{V_QF+k}, s{src}')
                    else:
                        a.e(f'v_mov_b32 v{V_QF+k}, 0')
                a.e(f'buffer_store_dwordx4 {vr(V_QF)}, v{V_T1}, {sr(R_WS)}, 0 offen offset:{16*i//2*2//2*1 if False else 8*i}')
                a.e('s_nop 1')
            a.e('s_mov_b64 exec, -1')
            a.e(f's_lshl_b32 s{S_T}, s2, 2')
            a.e(f's_add_u32 s{S_T}, s{S_T}, s{S_W}')
            a.e(f's_lshl_b32 s{S_T}, s{S_T}, 8')
            a.e(f's_add_u32 s{S_T}, s{S_T}, {WS_TS + (1<<18)}')
            a.e(f'v_lshlrev_b32 v{V_T2}, 2, v{V_LANE}')
            a.e(f'v_add_u32 v{V_T2}, s{S_T}, v{V_T2}')
            a.e(f'buffer_store_dword v250, v{V_T2}, {sr(R_WS)}, 0 offen')
            a.e('s_mov_b64 exec, 1')
            a.e('s_getreg_b32 s98, hwreg(HW_REG_XCC_ID)')
            a.e('s_getreg_b32 s99, hwreg(HW_REG_HW_ID)')
            a.e(f'v_mov_b32 v{V_QF}, s98')
            a.e(f'v_mov_b32 v{V_QF+1}, s99')
            a.e(f'buffer_store_dwordx2 {vr(V_QF,2)}, v{V_T1}, {sr(R_WS)}, 0 offen offset:64')
            a.e('s_waitcnt vmcnt(0)')
        a.label('L_end')
        a.e('s_endpgm')

    def build(self):
        self.prologue()
        self.k_phase()
        self.midpoint()
        self.v_phase()
        self.tail()
        head = f'''; Kernarg layout (64 bytes, pointers only, base s[0:1]):
; @launch grid=(256,1,1) block=(256,1,1) lds={LDS_BYTES}
.amdgcn_target "amdgcn-amd-amdhsa--gfx950"
.text
.globl {KNAME}
.p2align 8
.type {KNAME},@function
{KNAME}:
'''
        tailtxt = f'''.section .rodata,"a"
.p2align 6
.amdhsa_kernel {KNAME}
  .amdhsa_next_free_vgpr 512
  .amdhsa_next_free_sgpr 102
  .amdhsa_accum_offset 256
  .amdhsa_group_segment_fixed_size 0
  .amdhsa_kernarg_size 64
  .amdhsa_user_sgpr_count 2
  .amdhsa_user_sgpr_kernarg_segment_ptr 1
  .amdhsa_system_sgpr_workgroup_id_x 1
.end_amdhsa_kernel
'''
        return head + self.a.text() + tailtxt

if __name__ == '__main__':
    ap = argparse.ArgumentParser()
    ap.add_argument('-o', default='/dev/stdout')
    ap.add_argument('--PD', type=int, default=8)
    ap.add_argument('--G', type=int, default=4)
    ap.add_argument('--LAG', type=int, default=14)
    ap.add_argument('--ninit', type=int, default=3)
    ap.add_argument('--stamps', action='store_true')
    ap.add_argument('--wflags', default='')
    ap.add_argument('--kvflags', default='nt')
    ap.add_argument('--dbg', default='')
    ap.add_argument('--ainit', type=int, default=0)
    ap.add_argument('--wpg', type=int, default=4)
    ap.add_argument('--kfirst', type=int, default=8)
    ap.add_argument('--kper', type=float, default=1.0)
    ap.add_argument('--wqflags', default=None)
    ap.add_argument('--kflags', default=None)
    ap.add_argument('--vflags', default=None)
    x = ap.parse_args()
    k = Kernel(PD=x.PD, G=x.G, LAG=x.LAG, stamps=x.stamps, wflags=x.wflags, kvflags=x.kvflags, ninit=x.ninit, dbg=x.dbg, ainit=x.ainit, wpg=x.wpg, kfirst=x.kfirst, kper=x.kper, wqflags=x.wqflags, kflags=x.kflags, vflags=x.vflags)
    open(x.o, 'w').write(k.build())
```

```python
import sys, argparse

KNAME = 'standalone__mha_block_cached__decode_kernel'

class Asm:
    def __init__(self):
        self.L = []
        self.vm = []
    def e(self, s):
        for ln in s.split('\n'):
            self.L.append('    ' + ln.strip())
    def label(self, s):
        self.L.append(s + ':')
    def c(self, s):
        self.L.append('    ; ' + s)
    def vmop(self, tag, s):
        if len(self.vm) >= 63:
            self.e('s_waitcnt vmcnt(62)')
            self.vm = self.vm[-62:]
        self.e(s)
        self.vm.append(tag)
    def vmwait(self, tag):
        if tag not in self.vm:
            return False
        i = self.vm.index(tag)
        n = len(self.vm) - 1 - i
        self.e(f's_waitcnt vmcnt({n})')
        self.vm = self.vm[i + 1:]
        return True
    def vmdrain(self):
        self.e('s_waitcnt vmcnt(0)')
        self.vm = []
    def text(self):
        return '\n'.join(self.L) + '\n'

S_W = 3
S_X, S_K, S_V, S_WQ, S_WO, S_OUT, S_DBG, S_WS = 4, 6, 8, 10, 12, 14, 16, 18
R_K, R_V, R_WQ, R_WO, R_X, R_WS, R_OUT = 20, 24, 28, 32, 36, 40, 44
S_H, S_B, S_SP, S_ROW = 48, 49, 50, 51
S_BASE, S_T, S_CNT, S_C = 52, 53, 54, 55
S_MT = 56
S_EX = 64
S_WG = 66
S_TS = 82
V_TID, V_LANE, V_OK, V_OV, V_OWQ, V_OWO = 0, 1, 2, 3, 4, 5
V_T0, V_LDS, V_MAX, V_L, V_SC, V_E, V_PB, V_T, V_T1, V_T2 = 6, 7, 8, 9, 10, 11, 12, 13, 14, 15
V_D0, V_D1 = 16, 20
V_MASK = 24
V_SEL = 28
V_BX = 36
V_XD = 44
V_BQ = 60
V_RING = 92
V_INIT = 124
V_QF = 220
V_Y = 124
V_FIN = 92
L_PART, L_BF, L_MAX, L_LSUM, L_FLAG, L_Y, L_SC = 0x0000, 0x1000, 0x1200, 0x1210, 0x1220, 0x1400, 0x4000
LDS_BYTES = 0xC000
WS_ML = 0x80000
WS_TS = 3 << 20

def vr(b, n=4):
    return f'v[{b}:{b+n-1}]'
def ar(b, n=4):
    return f'a[{b}:{b+n-1}]'
def sr(b, n=4):
    return f's[{b}:{b+n-1}]'

class Kernel:
    def __init__(self, PD=8, G=4, LAG=14, stamps=False, wflags='', kvflags='nt', ninit=3, dbg='', ainit=0, wpg=4, kfirst=8, kper=1.0, wqflags=None, kflags=None, vflags=None, map=0):
        self.map = map
        self.kflags = kvflags if kflags is None else kflags
        self.vflags = kvflags if vflags is None else vflags
        self.dbg = dbg
        self.ainit, self.wpg, self.kfirst, self.kper = ainit, wpg, kfirst, kper
        self.wqflags = wflags if wqflags is None else wqflags
        self.PD, self.G, self.LAG, self.stamps = PD, G, LAG, stamps
        self.wflags, self.kvflags, self.ninit = wflags, kvflags, ninit
        self.a = Asm()
        self.nstamp = 0

    def stamp(self, pro=False):
        if self.stamps and (pro == ('pro' in self.dbg) or self.nstamp == 0) and self.nstamp < 8:
            r = S_TS + 2 * self.nstamp
            self.a.e(f's_memrealtime s[{r}:{r+1}]')
            self.nstamp += 1

    def tl(self):
        if self.stamps:
            a = self.a
            a.e('s_memrealtime s[98:99]')
            a.e('s_waitcnt lgkmcnt(0)')
            a.e('v_writelane_b32 v250, s98, m0')
            a.e('s_add_u32 m0, m0, 1')

    def blockoff(self, t):
        if self.G == 2: return t * 8192
        if self.G == 4: return (t >> 1) * 16384 + (t & 1) * 2048
        if self.G == 8: return t * 2048
    def waveshift(self):
        return {2: 11, 4: 12, 8: 13}[self.G]

    def kvload(self, kind, slot, dst, extra, base=S_BASE, tag=None):
        a = self.a
        t, j = slot >> 1, slot & 1
        off = extra + self.blockoff(t) + 256 * j
        hi, imm = off & ~0xFFF, off & 0xFFF
        srd, vo = (R_K, V_OK) if kind == 'K' else (R_V, V_OV)
        if base is None:
            if hi:
                a.e(f's_mov_b32 s{S_T}, {hi}')
                so = f's{S_T}'
            else:
                so = '0'
        elif hi:
            a.e(f's_add_u32 s{S_T}, s{base}, {hi}')
            so = f's{S_T}'
        else:
            so = f's{base}'
        fl = self.kflags if kind == 'K' else self.vflags
        a.vmop(tag, f'buffer_load_dwordx4 {dst}, v{vo}, {sr(srd)}, {so} offen offset:{imm} {fl}')

    def prologue(self):
        a = self.a
        a.e(f's_cmp_ge_u32 s2, 256')
        a.e('s_cbranch_scc1 L_end')
        a.e(f's_load_dwordx16 s[4:19], s[0:1], 0')
        self.stamp()
        a.e(f'v_lshrrev_b32 v{V_T0}, 6, v{V_TID}')
        a.e(f'v_and_b32 v{V_LANE}, 63, v{V_TID}')
        a.e(f'v_readfirstlane_b32 s{S_W}, v{V_T0}')
        a.c('workgroup id -> head (two heads per XCD under round-robin placement), batch, split')
        if self.map == 0:
            a.e(f's_and_b32 s{S_H}, s2, 7')
            a.e(f's_lshl_b32 s{S_H}, s{S_H}, 1')
            a.e(f's_bfe_u32 s{S_T}, s2, 0x10003')
            a.e(f's_add_u32 s{S_H}, s{S_H}, s{S_T}')
            a.e(f's_bfe_u32 s{S_SP}, s2, 0x20004')
            a.e(f's_lshr_b32 s{S_B}, s2, 6')
        else:
            a.e(f's_lshr_b32 s{S_H}, s2, 4')
            a.e(f's_and_b32 s{S_SP}, s2, 3')
            a.e(f's_bfe_u32 s{S_B}, s2, 0x20002')
        a.e(f's_lshl_b32 s{S_ROW}, s{S_B}, 6')
        a.e(f's_lshl_b32 s{S_T}, s{S_H}, 2')
        a.e(f's_add_u32 s{S_ROW}, s{S_ROW}, s{S_T}')
        a.e(f's_add_u32 s{S_ROW}, s{S_ROW}, s{S_SP}')
        a.e(f's_mov_b32 s{S_C}, 0x3db8aa3b')
        if self.stamps:
            a.e('s_mov_b32 m0, 0')
        g, m, c, kk = V_T, V_T1, V_T2, V_E
        a.e(f'v_lshrrev_b32 v{g}, 4, v{V_LANE}')
        a.e(f'v_and_b32 v{m}, 15, v{V_LANE}')
        a.e(f'v_and_b32 v{c}, 3, v{V_LANE}')
        a.e(f'v_bfe_u32 v{kk}, v{V_LANE}, 2, 2')
        a.e(f'v_lshlrev_b32 v{V_OK}, 9, v{kk}')
        a.e(f'v_lshl_add_u32 v{V_OK}, v{g}, 6, v{V_OK}')
        a.e(f'v_lshl_add_u32 v{V_OK}, v{c}, 4, v{V_OK}')
        a.e(f'v_lshlrev_b32 v{V_OV}, 9, v{g}')
        a.e(f'v_lshl_add_u32 v{V_OV}, v{m}, 4, v{V_OV}')
        a.e(f's_lshl_b32 s{S_T}, s{S_W}, {self.waveshift()}')
        a.e(f'v_add_u32 v{V_OK}, s{S_T}, v{V_OK}')
        a.e(f'v_add_u32 v{V_OV}, s{S_T}, v{V_OV}')
        a.e(f's_mul_i32 s{S_T}, s{S_W}, {112*8192}')
        a.e(f'v_mul_u32_u24 v{V_OWQ}, {28*8192}, v{g}')
        a.e(f'v_lshl_add_u32 v{V_OWQ}, v{m}, 4, v{V_OWQ}')
        a.e(f'v_add_u32 v{V_OWQ}, s{S_T}, v{V_OWQ}')
        a.e(f's_mul_i32 s{S_T}, s{S_W}, {64*896}')
        a.e(f'v_mul_u32_u24 v{V_OWO}, {16*896}, v{g}')
        a.e(f'v_lshl_add_u32 v{V_OWO}, v{m}, 4, v{V_OWO}')
        a.e(f'v_add_u32 v{V_OWO}, s{S_T}, v{V_OWO}')
        a.e(f's_mul_i32 s{S_T}, s{S_W}, 224')
        a.e(f's_mul_i32 s{S_CNT}, s{S_B}, 896')
        a.e(f's_add_u32 s{S_T}, s{S_T}, s{S_CNT}')
        a.e(f'v_mul_u32_u24 v{V_T0}, 56, v{g}')
        a.e(f'v_add_u32 v{V_T0}, s{S_T}, v{V_T0}')
        a.e('s_waitcnt lgkmcnt(0)')
        a.e(f's_lshl_b32 s{S_T}, s{S_B}, 4')
        a.e(f's_add_u32 s{S_T}, s{S_T}, s{S_H}')
        a.e(f's_lshl_b32 s{S_T}, s{S_T}, 2')
        a.e(f's_add_u32 s{S_T}, s{S_T}, s{S_SP}')
        a.e(f's_lshl_b32 s{S_CNT}, s{S_T}, 20')
        for (p, r) in ((S_K, R_K), (S_V, R_V)):
            a.e(f's_add_u32 s{r}, s{p}, s{S_CNT}')
            a.e(f's_addc_u32 s{r+1}, s{p+1}, 0')
            a.e(f's_mov_b32 s{r+2}, 0x100000')
            a.e(f's_mov_b32 s{r+3}, 0x20000')
        a.e(f's_mov_b32 s{R_X}, s{S_X}')
        a.e(f's_mov_b32 s{R_X+1}, s{S_X+1}')
        a.e(f's_mov_b32 s{R_X+2}, 3584')
        a.e(f's_mov_b32 s{R_X+3}, 0x20000')
        a.e(f's_lshl_b32 s{S_T}, s{S_H}, 9')
        a.e(f's_add_u32 s{R_WQ}, s{S_WQ}, s{S_T}')
        a.e(f's_addc_u32 s{R_WQ+1}, s{S_WQ+1}, 0')
        a.e(f's_sub_u32 s{R_WQ+2}, {448*8192}, s{S_T}')
        a.e(f's_mov_b32 s{R_WQ+3}, 0x20000')
        a.e(f's_mul_i32 s{S_T}, s{S_H}, {256*896}')
        a.e(f's_add_u32 s{R_WO}, s{S_WO}, s{S_T}')
        a.e(f's_addc_u32 s{R_WO+1}, s{S_WO+1}, 0')
        a.e(f's_mov_b32 s{R_WO+2}, {256*896}')
        a.e(f's_mov_b32 s{R_WO+3}, 0x20000')
        for i, (n, nm) in enumerate(((4, 'x4'), (4, 'x4'), (4, 'x4'), (2, 'x2'))):
            a.vmop(('x', i), f'buffer_load_dword{nm} {vr(V_XD+4*i, n)}, v{V_T0}, {sr(R_X)}, 0 offen offset:{16*i}')
        a.e(f's_mov_b32 s{R_WS}, s{S_WS}')
        a.e(f's_mov_b32 s{R_WS+1}, s{S_WS+1}')
        a.e(f's_mov_b32 s{R_WS+2}, 0x400000')
        a.e(f's_mov_b32 s{R_WS+3}, 0x20000')
        a.e(f's_mov_b32 s{R_OUT}, s{S_OUT}')
        a.e(f's_mov_b32 s{R_OUT+1}, s{S_OUT+1}')
        a.e(f's_mov_b32 s{R_OUT+2}, 3584')
        a.e(f's_mov_b32 s{R_OUT+3}, 0x20000')

        ninit = self.ninit
        ntot = ninit + self.ainit
        def initreg(gi, s):
            if gi < ninit: return vr(V_INIT + 32 * gi + 4 * s)
            return ar(224 + 4 * s)
        self.initreg = initreg
        kq = [('ring', s) for s in range(8)] + [(('init', gi), s) for gi in range(ntot) for s in range(8)]
        def k_issue(n):
            for _ in range(n):
                if not kq: return
                grp, s = kq.pop(0)
                if grp == 'ring':
                    self.kvload('K', s, vr(V_RING + 4 * s), ntot * 32768, base=None, tag=('ring', s))
                else:
                    gi = grp[1]
                    self.kvload('K', s, initreg(gi, s), gi * 32768, base=None, tag=('init', gi, s))
        def wq_issue(u):
            a.e(f's_mov_b32 s{S_T}, {u*8192}')
            for j in range(2):
                a.vmop(('wq', u, j), f'buffer_load_dwordx4 {ar(8*u+4*j)}, v{V_OWQ}, {sr(R_WQ)}, s{S_T} offen offset:{256*j} {self.wqflags}')
        def consume(u):
            if u == 0:
                a.vmwait(('x', 3))
            st = V_BX + 4 * (u & 1)
            xd = V_XD + (u >> 1)
            for jj in range(4):
                a.e(f'v_perm_b32 v{st+jj}, v{xd}, v{xd}, v{V_SEL + 2*jj + (u & 1)}')
            a.vmwait(('wq', u, 1))
            if u in (0, 7, 14, 21, 27): self.stamp(True)
            a.e('s_nop 1')
            for j in range(2):
                d = V_D0 if j == 0 else V_D1
                cacc = '0' if u == 0 else vr(d)
                a.e(f'v_mfma_f32_16x16x32_bf16 {vr(d)}, {ar(8*u+4*j)}, {vr(st)}, {cacc}')
        k_issue(self.kfirst)
        acc = 0.0
        done = 0
        for u in range(28):
            wq_issue(u)
            acc += self.kper
            while acc >= 1.0:
                k_issue(1); acc -= 1.0
            if u == 1:
                self.lane_consts()
            if u >= self.LAG:
                consume(done); done += 1
        k_issue(64)
        while done < 28:
            consume(done); done += 1
        self.stamp()
        self.stamp(True)
        n8 = V_T1
        a.e(f'v_lshrrev_b32 v{V_T}, 4, v{V_LANE}')
        a.e(f'v_lshlrev_b32 v{V_T}, 7, v{V_T}')
        a.e(f'v_lshl_add_u32 v{V_T}, v{V_T1}, 2, v{V_T}')
        a.e(f's_lshl_b32 s{S_T}, s{S_W}, 10')
        a.e(f'v_add_u32 v{V_QF}, s{S_T}, v{V_T}')
        a.e(f's_mov_b32 exec_lo, 0x00ff00ff\ns_mov_b32 exec_hi, 0x00ff00ff')
        a.e('s_nop 7')
        for j in range(2):
            for r in range(4):
                d = (V_D0 if j == 0 else V_D1) + r
                a.e(f'ds_write_b32 v{V_QF}, v{d} offset:{L_PART + j*512 + r*32}')
        a.e('s_mov_b64 exec, -1')
        a.e('s_waitcnt lgkmcnt(0)\ns_barrier')
        a.e(f'v_lshlrev_b32 v{V_T}, 2, v{V_TID}')
        for w in range(4):
            a.e(f'ds_read_b32 v{V_QF+w}, v{V_T} offset:{L_PART + w*1024}')
        a.e(f'v_lshlrev_b32 v{V_T2}, 1, v{V_TID}')
        a.e('s_waitcnt lgkmcnt(0)')
        a.e(f'v_add_f32 v{V_QF}, v{V_QF}, v{V_QF+1}')
        a.e(f'v_add_f32 v{V_QF+2}, v{V_QF+2}, v{V_QF+3}')
        a.e(f'v_add_f32 v{V_QF}, v{V_QF}, v{V_QF+2}')
        a.e(f'v_cvt_pk_bf16_f32 v{V_QF}, v{V_QF}, v{V_QF}')
        a.e(f'ds_write_b16 v{V_T2}, v{V_QF} offset:{L_BF}')
        a.e(f'v_lshrrev_b32 v{V_T}, 4, v{V_LANE}')
        a.e(f'v_lshlrev_b32 v{V_T}, 6, v{V_T}')
        a.e(f'v_and_b32 v{V_T2}, 3, v{V_LANE}')
        a.e(f'v_lshl_add_u32 v{V_T}, v{V_T2}, 4, v{V_T}')
        a.e('s_waitcnt lgkmcnt(0)\ns_barrier')
        for j in range(2):
            a.e(f'ds_read_b128 {vr(V_QF+4*j)}, v{V_T} offset:{L_BF + 256*j}')
        for t in range(4):
            mk = 0x000F000F << (4 * t)
            a.e(f's_mov_b32 s{S_MT+2*t}, {mk:#x}\ns_mov_b32 s{S_MT+2*t+1}, {mk:#x}')
        a.e(f's_lshl_b32 s{S_T}, s{S_W}, 13')
        a.e(f's_add_u32 s{S_T}, s{S_T}, {L_SC}')
        a.e(f'v_lshlrev_b32 v{V_LDS}, 2, v{V_LANE}')
        a.e(f'v_add_u32 v{V_LDS}, s{S_T}, v{V_LDS}')
        a.e(f'v_mov_b32 v{V_MAX}, 0xff800000')
        a.e('s_waitcnt lgkmcnt(0)')
        for t in range(4):
            for j in range(2):
                for r in range(4):
                    a.e(f'v_cndmask_b32 v{V_BQ + 4*(2*t+j) + r}, 0, v{V_QF+4*j+r}, s[{S_MT+2*t}:{S_MT+2*t+1}]')
        a.e('s_nop 1')
        self.stamp()
        self.stamp(True)

    def lane_consts(self):
        a = self.a
        n = V_T1
        a.e(f'v_and_b32 v{V_T2}, 1, v{n}')
        a.e(f'v_cmp_eq_u32 vcc, 1, v{V_T2}')
        a.e(f'v_mov_b32 v{V_E}, 0x0c0c0100\nv_mov_b32 v{V_PB}, 0x01000c0c')
        a.e(f'v_cndmask_b32 v{V_E}, v{V_E}, v{V_PB}, vcc')
        a.e(f'v_mov_b32 v{V_PB}, 0x0c0c0302\nv_mov_b32 v{V_SC}, 0x03020c0c')
        a.e(f'v_cndmask_b32 v{V_PB}, v{V_PB}, v{V_SC}, vcc')
        a.e(f'v_mov_b32 v{V_SC}, 0x0000ffff\nv_mov_b32 v{V_L}, 0xffff0000')
        a.e(f'v_cndmask_b32 v{V_SC}, v{V_SC}, v{V_L}, vcc')
        a.e(f'v_lshrrev_b32 v{V_T2}, 1, v{n}')
        a.e(f'v_mov_b32 v{V_L}, 0x0c0c0c0c')
        for jj in range(4):
            a.e(f'v_cmp_eq_u32 vcc, {jj}, v{V_T2}')
            a.e('s_nop 1')
            a.e(f'v_cndmask_b32 v{V_SEL+2*jj}, v{V_L}, v{V_E}, vcc')
            a.e(f'v_cndmask_b32 v{V_SEL+2*jj+1}, v{V_L}, v{V_PB}, vcc')
            a.e(f'v_cndmask_b32 v{V_MASK+jj}, 0, v{V_SC}, vcc')
        a.e(f'v_mov_b32 v{V_L}, 0')

    def score_finish(self, off):
        a = self.a
        a.e('s_nop 7')
        dpp = 'row_mask:0xf bank_mask:0xf'
        a.e(f'v_mov_b32_dpp v{V_T}, v{V_D0} quad_perm:[0,0,0,0] {dpp}')
        a.e(f'v_mov_b32_dpp v{V_T1}, v{V_D0+2} quad_perm:[2,2,2,2] {dpp}')
        a.e('s_nop 0')
        a.e(f'v_add_f32_dpp v{V_T}, v{V_D0+1}, v{V_T} quad_perm:[1,1,1,1] {dpp}')
        a.e(f'v_add_f32_dpp v{V_T1}, v{V_D0+3}, v{V_T1} quad_perm:[3,3,3,3] {dpp}')
        a.e(f'v_add_f32 v{V_T}, v{V_T}, v{V_T1}')
        a.e(f'ds_write_b32 v{V_LDS}, v{V_T} offset:{off}')
        a.e(f'v_max_f32 v{V_MAX}, v{V_MAX}, v{V_T}')

    def wo_issue(self):
        if not self.woq or 'nowo' in self.dbg: return
        z = self.woq.pop(0)
        u, cb = z >> 2, z & 3
        a = self.a
        a.e(f's_mov_b32 s{S_T}, {u*896}')
        a.vmop(('wo', z), f'buffer_load_dwordx4 {ar(4*z)}, v{V_OWO}, {sr(R_WO)}, s{S_T} offen offset:{224*cb} {self.wflags}')

    def k_group(self, src, nxt, scoff, first_ring=False, nwo=0):
        a = self.a
        PD = self.PD
        wo_at = {0: [], 1: [3], 2: [1, 5], 3: [1, 4, 6], 4: [1, 3, 5, 7], 8: list(range(8))}[nwo]
        for s in range(8):
            a.vmwait(src['tag'](s))
            cacc = '0' if s == 0 else vr(V_D0)
            a.e(f'v_mfma_f32_16x16x32_bf16 {vr(V_D0)}, {src["reg"](s)}, {vr(V_BQ + 4*s)}, {cacc}')
            if nxt is not None:
                n = s + PD
                if n < 8:
                    if not first_ring:
                        self.kvload('K', n, vr(V_RING + 4*n), 0, tag=('ring', n))
                elif nxt == 'K':
                    self.kvload('K', n - 8, vr(V_RING + 4*(n-8)), 32768, tag=('ring', n - 8))
                else:
                    self.kvload('V', n - 8, vr(V_RING + 4*(n-8)), 0, base=None, tag=('ring', n - 8))
            if s in wo_at:
                self.wo_issue()
        self.score_finish(scoff)
        self.tl()

    def k_phase(self):
        a = self.a
        ntot = self.ninit + self.ainit
        self.woq = list(range(64))
        ring = {'reg': lambda s: vr(V_RING + 4*s), 'tag': lambda s: ('ring', s)}
        a.e(f's_mov_b32 s{S_BASE}, {ntot*32768}')
        a.e(f'v_mov_b32 v{V_PB}, v{V_LDS}')
        self.k_group(ring, 'K', ntot * 256, first_ring=True)
        a.e(f's_add_u32 s{S_BASE}, s{S_BASE}, 32768')
        for gi in range(ntot):
            self.k_group({'reg': (lambda s, gi=gi: self.initreg(gi, s)), 'tag': (lambda s, gi=gi: ('init', gi, s))}, None, gi * 256)
        g = ntot + 1
        while self.woq and 'nowo' not in self.dbg:
            assert g <= 30
            self.k_group(ring, 'K', g * 256, nwo=self.wpg)
            a.e(f's_add_u32 s{S_BASE}, s{S_BASE}, 32768')
            g += 1
        while any(t[0] != 'ring' for t in a.vm):
            assert g <= 30
            self.k_group(ring, 'K', g * 256)
            a.e(f's_add_u32 s{S_BASE}, s{S_BASE}, 32768')
            g += 1
        a.e(f'v_add_u32 v{V_LDS}, {g*256}, v{V_LDS}')
        if g <= 30:
            a.e(f's_mov_b32 s{S_CNT}, {31 - g}')
            entry = list(a.vm)
            a.label('L_kloop')
            self.k_group(ring, 'K', 0)
            assert a.vm == entry, (a.vm, entry)
            a.e(f'v_add_u32 v{V_LDS}, 256, v{V_LDS}')
            a.e(f's_add_u32 s{S_BASE}, s{S_BASE}, 32768')
            a.e(f's_sub_u32 s{S_CNT}, s{S_CNT}, 1')
            a.e(f's_cmp_lg_u32 s{S_CNT}, 0')
            a.e('s_cbranch_scc1 L_kloop')
        self.k_group(ring, 'V', 0)
        a.e(f'v_mov_b32 v{V_LDS}, v{V_PB}')
        self.stamp()

    def midpoint(self):
        a = self.a
        v = V_MAX
        for ctl in ('row_ror:4 row_mask:0xf', 'row_ror:8 row_mask:0xf', 'row_bcast:15 row_mask:0xa', 'row_bcast:31 row_mask:0xc'):
            a.e('s_nop 1')
            a.e(f'v_max_f32_dpp v{v}, v{v}, v{v} {ctl} bank_mask:0xf')
        a.e(f's_lshl_b32 s{S_T}, s{S_W}, 2')
        a.e(f'v_mov_b32 v{V_T}, s{S_T}')
        a.e('s_mov_b32 exec_lo, 0\ns_mov_b32 exec_hi, 0x80000000')
        a.e(f'ds_write_b32 v{V_T}, v{v} offset:{L_MAX}')
        a.e('s_mov_b64 exec, -1')
        a.e(f'v_mov_b32 v{V_T}, 0')
        a.e('s_waitcnt lgkmcnt(0)\ns_barrier')
        a.e(f'ds_read_b128 {vr(V_QF)}, v{V_T} offset:{L_MAX}')
        a.e(f'ds_read_b32 v{V_SC}, v{V_LDS}')
        a.e('s_waitcnt lgkmcnt(0)')
        a.e(f'v_max3_f32 v{V_MAX}, v{V_QF}, v{V_QF+1}, v{V_QF+2}')
        a.e(f'v_max_f32 v{V_MAX}, v{V_MAX}, v{V_QF+3}')
        a.e(f'v_mul_f32 v{V_T2}, s{S_C}, v{V_MAX}')
        a.e(f'v_sub_f32 v{V_T2}, 0, v{V_T2}')

    def v_group(self, last):
        a = self.a
        PD = self.PD
        a.e('s_waitcnt lgkmcnt(0)')
        a.e(f'v_fma_f32 v{V_E}, v{V_SC}, s{S_C}, v{V_T2}')
        if not last:
            a.e(f'ds_read_b32 v{V_SC}, v{V_LDS} offset:256')
        a.e(f'v_exp_f32 v{V_E}, v{V_E}')
        a.e('s_nop 0')
        a.e(f'v_cvt_pk_bf16_f32 v{V_PB}, v{V_E}, v{V_E}')
        a.e(f'v_add_f32 v{V_L}, v{V_L}, v{V_E}')
        a.e('s_nop 0')
        def build(t):
            st = V_BX + 4 * (t & 1)
            for jj in range(4):
                a.e(f'v_and_b32_dpp v{st+jj}, v{V_PB}, v{V_MASK+jj} row_newbcast:{4*t} row_mask:0xf bank_mask:0xf')
        build(0)
        a.e('s_nop 0')
        for t in range(4):
            st = V_BX + 4 * (t & 1)
            for j in range(2):
                s = 2 * t + j
                a.vmwait(('ring', s))
                d = V_D0 if j == 0 else V_D1
                a.e(f'v_mfma_f32_16x16x32_bf16 {vr(d)}, {vr(V_RING + 4*s)}, {vr(st)}, {vr(d)}')
                n = s + PD
                if n < 8:
                    self.kvload('V', n, vr(V_RING + 4*n), 0, tag=('ring', n))
                elif not last:
                    self.kvload('V', n - 8, vr(V_RING + 4*(n-8)), 32768, tag=('ring', n - 8))
                if j == 0 and t < 3:
                    build(t + 1)
        self.tl()

    def v_phase(self):
        a = self.a
        a.e(f's_mov_b32 s{S_BASE}, 0')
        a.e(f's_mov_b32 s{S_CNT}, 31')
        for r in range(8):
            a.e(f'v_mov_b32 v{V_D0+r}, 0')
        entry = list(a.vm)
        a.label('L_vloop')
        self.v_group(False)
        assert a.vm == entry, (a.vm, entry)
        a.e(f'v_add_u32 v{V_LDS}, 256, v{V_LDS}')
        a.e(f's_add_u32 s{S_BASE}, s{S_BASE}, 32768')
        a.e(f's_sub_u32 s{S_CNT}, s{S_CNT}, 1')
        a.e(f's_cmp_lg_u32 s{S_CNT}, 0')
        a.e('s_cbranch_scc1 L_vloop')
        self.v_group(True)
        self.stamp()

    def tail(self):
        a = self.a
        v = V_L
        for ctl in ('row_ror:4 row_mask:0xf', 'row_ror:8 row_mask:0xf', 'row_bcast:15 row_mask:0xa', 'row_bcast:31 row_mask:0xc'):
            a.e('s_nop 1')
            a.e(f'v_add_f32_dpp v{v}, v{v}, v{v} {ctl} bank_mask:0xf')
        a.e(f's_lshl_b32 s{S_T}, s{S_W}, 2')
        a.e(f'v_mov_b32 v{V_T}, s{S_T}')
        a.e('s_mov_b32 exec_lo, 0\ns_mov_b32 exec_hi, 0x80000000')
        a.e(f'ds_write_b32 v{V_T}, v{v} offset:{L_LSUM}')
        a.e('s_mov_b64 exec, -1')
        a.e(f'v_lshrrev_b32 v{V_T}, 4, v{V_LANE}')
        a.e(f'v_lshlrev_b32 v{V_T}, 7, v{V_T}')
        a.e(f'v_and_b32 v{V_T1}, 15, v{V_LANE}')
        a.e(f'v_lshl_add_u32 v{V_T}, v{V_T1}, 2, v{V_T}')
        a.e(f's_lshl_b32 s{S_T}, s{S_W}, 10')
        a.e(f'v_add_u32 v{V_QF}, s{S_T}, v{V_T}')
        a.e(f's_mov_b32 exec_lo, 0x00ff00ff\ns_mov_b32 exec_hi, 0x00ff00ff')
        for j in range(2):
            for r in range(4):
                d = (V_D0 if j == 0 else V_D1) + r
                a.e(f'ds_write_b32 v{V_QF}, v{d} offset:{L_PART + j*512 + r*32}')
        a.e('s_mov_b64 exec, -1')
        a.e('s_waitcnt lgkmcnt(0)\ns_barrier')
        a.e(f'v_lshlrev_b32 v{V_E}, 2, v{V_TID}')
        for w in range(4):
            a.e(f'ds_read_b32 v{V_QF+w}, v{V_E} offset:{L_PART + w*1024}')
        a.e(f'v_lshlrev_b32 v{V_SC}, 1, v{V_TID}')
        a.e(f'v_lshrrev_b32 v{V_PB}, 4, v{V_LANE}')
        a.e(f'v_lshlrev_b32 v{V_PB}, 5, v{V_PB}')
        a.e(f's_lshl_b32 s{S_T}, s{S_W}, 7')
        a.e(f'v_add_u32 v{V_PB}, s{S_T}, v{V_PB}')
        a.e('s_waitcnt lgkmcnt(0)')
        a.e(f'v_add_f32 v{V_QF}, v{V_QF}, v{V_QF+1}')
        a.e(f'v_add_f32 v{V_QF+2}, v{V_QF+2}, v{V_QF+3}')
        a.e(f'v_add_f32 v{V_QF}, v{V_QF}, v{V_QF+2}')
        a.e(f'v_cvt_pk_bf16_f32 v{V_QF}, v{V_QF}, v{V_QF}')
        a.e(f'ds_write_b16 v{V_SC}, v{V_QF} offset:{L_BF}')
        a.e('s_waitcnt lgkmcnt(0)')
        for i in range(2):
            a.e(f'ds_read_b128 {vr(V_XD+4*i)}, v{V_PB} offset:{L_BF + 16*i}')
        a.e('s_waitcnt lgkmcnt(0)')
        def build(u):
            st = V_BX + 4 * (u & 1)
            xd = V_XD + (u >> 1)
            for jj in range(4):
                a.e(f'v_perm_b32 v{st+jj}, v{xd}, v{xd}, v{V_SEL + 2*jj + (u & 1)}')
        build(0)
        a.e('s_nop 1')
        for u in range(16):
            st = V_BX + 4 * (u & 1)
            for cb in range(4):
                y = V_Y + 4 * cb
                cacc = '0' if u == 0 else vr(y)
                a.e(f'v_mfma_f32_16x16x32_bf16 {vr(y)}, {ar(4*(4*u+cb))}, {vr(st)}, {cacc}')
                if cb == 0 and u < 15:
                    build(u + 1)
        a.e(f's_lshl_b32 s{S_T}, s{S_W}, 11')
        a.e(f'v_add_u32 v{V_QF}, s{S_T}, v{V_T}')
        a.e(f's_mov_b32 exec_lo, 0x00ff00ff\ns_mov_b32 exec_hi, 0x00ff00ff')
        a.e('s_nop 7')
        for r in range(4):
            if r == 2:
                a.e('s_mov_b32 exec_hi, 0x000000ff')
            for cb in range(4):
                a.e(f'ds_write_b32 v{V_QF}, v{V_Y+4*cb+r} offset:{L_Y + cb*448 + r*32}')
        a.e('s_mov_b64 exec, -1')
        a.e('s_waitcnt lgkmcnt(0)\ns_barrier')
        self.stamp()
        a.e(f's_cmp_lg_u32 s{S_W}, 0')
        a.e('s_cbranch_scc1 L_pubdone')
        a.e(f'v_lshlrev_b32 v{V_T}, 4, v{V_LANE}')
        for i in range(2):
            for w in range(4):
                a.e(f'ds_read_b128 {vr(V_FIN + 16*i + 4*w)}, v{V_T} offset:{L_Y + w*2048 + i*1024}')
        a.e(f'v_mov_b32 v{V_T1}, 0')
        a.e(f'ds_read_b128 {vr(V_QF)}, v{V_T1} offset:{L_LSUM}')
        a.e(f's_lshl_b32 s{S_T}, s{S_ROW}, 11')
        a.e(f'v_add_u32 v{V_T}, s{S_T}, v{V_T}')
        a.e(f's_lshl_b32 s{S_T}, s{S_ROW}, 3')
        a.e(f's_add_u32 s{S_T}, s{S_T}, {WS_ML}')
        a.e('s_waitcnt lgkmcnt(0)')
        for i in range(2):
            b = V_FIN + 16 * i
            for r in range(4):
                a.e(f'v_add_f32 v{b+r}, v{b+r}, v{b+4+r}')
                a.e(f'v_add_f32 v{b+8+r}, v{b+8+r}, v{b+12+r}')
            for r in range(4):
                a.e(f'v_add_f32 v{b+r}, v{b+r}, v{b+8+r}')
            a.e(f'buffer_store_dwordx4 {vr(b)}, v{V_T}, {sr(R_WS)}, 0 offen offset:{1024*i} sc1')
        a.e(f'v_add_f32 v{V_QF}, v{V_QF}, v{V_QF+1}')
        a.e(f'v_add_f32 v{V_QF+2}, v{V_QF+2}, v{V_QF+3}')
        a.e(f'v_add_f32 v{V_QF+1}, v{V_QF}, v{V_QF+2}')
        a.e(f'v_mov_b32 v{V_QF}, v{V_MAX}')
        a.e(f'v_mov_b32 v{V_T1}, s{S_T}')
        a.e('s_mov_b64 exec, 1')
        a.e(f'buffer_store_dwordx2 {vr(V_QF, 2)}, v{V_T1}, {sr(R_WS)}, 0 offen sc1')
        a.e('s_waitcnt vmcnt(0)')
        a.e(f's_lshl_b32 s{S_T}, s{S_B}, 2')
        a.e(f'v_mov_b32 v{V_T1}, s{S_T}')
        a.e(f'v_mov_b32 v{V_T2}, 1')
        a.e(f'global_atomic_add v{V_T2}, v{V_T1}, v{V_T2}, s[{S_DBG}:{S_DBG+1}] sc0')
        a.e(f'v_mov_b32 v{V_T1}, 0')
        a.e('s_waitcnt vmcnt(0)')
        a.e(f'ds_write_b32 v{V_T1}, v{V_T2} offset:{L_FLAG}')
        a.e('s_mov_b64 exec, -1')
        a.label('L_pubdone')
        a.e('s_waitcnt lgkmcnt(0)\ns_barrier')
        a.e(f'v_mov_b32 v{V_T1}, 0')
        a.e(f'ds_read_b32 v{V_T2}, v{V_T1} offset:{L_FLAG}')
        a.e('s_waitcnt lgkmcnt(0)')
        a.e(f'v_readfirstlane_b32 s{S_T}, v{V_T2}')
        self.stamp()
        a.e('s_nop 3')
        a.e(f's_cmp_lg_u32 s{S_T}, 63')
        a.e('s_cbranch_scc1 L_fin_skip')
        a.e(f's_lshl_b32 s{S_T}, s{S_B}, 6')
        a.e(f's_lshl_b32 s{S_CNT}, s{S_W}, 4')
        a.e(f's_add_u32 s{S_CNT}, s{S_CNT}, s{S_T}')
        a.e(f'v_and_b32 v{V_T1}, 15, v{V_LANE}')
        a.e(f'v_add_u32 v{V_T1}, s{S_CNT}, v{V_T1}')
        a.e(f'v_lshlrev_b32 v{V_T1}, 3, v{V_T1}')
        a.e(f'v_add_u32 v{V_T1}, {WS_ML}, v{V_T1}')
        a.vm = []
        a.vmop('ml', f'buffer_load_dwordx2 {vr(V_QF, 2)}, v{V_T1}, {sr(R_WS)}, 0 offen sc1')
        a.e(f's_lshl_b32 s{S_CNT}, s{S_CNT}, 11')
        a.e(f'v_lshlrev_b32 v{V_T}, 4, v{V_LANE}')
        a.e(f'v_add_u32 v{V_T}, s{S_CNT}, v{V_T}')
        for j in range(16):
            a.e(f's_mov_b32 s{S_T}, {j*2048}')
            for i in range(2):
                a.vmop(('y', j, i), f'buffer_load_dwordx4 {vr(V_FIN + 8*j + 4*i)}, v{V_T}, {sr(R_WS)}, s{S_T} offen offset:{1024*i} sc1')
        a.vmwait('ml')
        m, l, M, e = V_QF, V_QF + 1, V_QF + 2, V_QF + 3
        a.e(f'v_max_f32_dpp v{M}, v{m}, v{m} quad_perm:[1,0,3,2] row_mask:0xf bank_mask:0xf')
        a.e('s_nop 1')
        a.e(f'v_max_f32_dpp v{M}, v{M}, v{M} quad_perm:[2,3,0,1] row_mask:0xf bank_mask:0xf')
        a.e(f'v_sub_f32 v{e}, v{m}, v{M}')
        a.e(f'v_mul_f32 v{e}, s{S_C}, v{e}')
        a.e(f'v_exp_f32 v{e}, v{e}')
        a.e('s_nop 0')
        a.e(f'v_mul_f32 v{l}, v{l}, v{e}')
        a.e('s_nop 1')
        a.e(f'v_add_f32_dpp v{l}, v{l}, v{l} quad_perm:[1,0,3,2] row_mask:0xf bank_mask:0xf')
        a.e('s_nop 1')
        a.e(f'v_add_f32_dpp v{l}, v{l}, v{l} quad_perm:[2,3,0,1] row_mask:0xf bank_mask:0xf')
        a.e(f'v_rcp_f32 v{l}, v{l}')
        a.e('s_nop 0')
        a.e(f'v_mul_f32 v{e}, v{e}, v{l}')
        a.e('s_nop 0')
        for j in range(16):
            a.e(f'v_readlane_b32 s{S_WG+j}, v{e}, {j}')
        for r in range(8):
            a.e(f'v_mov_b32 v{V_D0+r}, 0')
        for j in range(16):
            a.vmwait(('y', j, 1))
            for i in range(2):
                for r in range(4):
                    a.e(f'v_fmac_f32 v{V_D0+4*i+r}, s{S_WG+j}, v{V_FIN+8*j+4*i+r}')
        a.e(f's_lshl_b32 s{S_T}, s{S_W}, 11')
        a.e(f'v_lshlrev_b32 v{V_T}, 4, v{V_LANE}')
        a.e(f'v_add_u32 v{V_T}, s{S_T}, v{V_T}')
        a.e(f'ds_write_b128 v{V_T}, {vr(V_D0)} offset:{L_Y}')
        a.e(f'ds_write_b128 v{V_T}, {vr(V_D1)} offset:{L_Y + 1024}')
        a.e('s_waitcnt lgkmcnt(0)\ns_barrier')
        a.e(f'v_lshlrev_b32 v{V_T}, 3, v{V_TID}')
        for w in range(4):
            a.e(f'ds_read_b64 {vr(V_QF+2*w, 2)}, v{V_T} offset:{L_Y + w*2048}')
        a.e(f's_mul_i32 s{S_T}, s{S_B}, 896')
        a.e(f'v_lshlrev_b32 v{V_T1}, 2, v{V_TID}')
        a.e(f'v_add_u32 v{V_T1}, s{S_T}, v{V_T1}')
        a.e(f'v_cmp_gt_u32 vcc, 224, v{V_TID}')
        a.e('s_waitcnt lgkmcnt(0)')
        for r in range(2):
            a.e(f'v_add_f32 v{V_QF+r}, v{V_QF+r}, v{V_QF+2+r}')
            a.e(f'v_add_f32 v{V_QF+4+r}, v{V_QF+4+r}, v{V_QF+6+r}')
            a.e(f'v_add_f32 v{V_QF+r}, v{V_QF+r}, v{V_QF+4+r}')
        a.e(f'v_cvt_pk_bf16_f32 v{V_QF}, v{V_QF}, v{V_QF+1}')
        a.e(f's_and_saveexec_b64 s[{S_EX}:{S_EX+1}], vcc')
        a.e('s_cbranch_execz L_fin_restore')
        a.e(f'buffer_store_dword v{V_QF}, v{V_T1}, {sr(R_OUT)}, 0 offen')
        a.label('L_fin_restore')
        a.e(f's_mov_b64 exec, s[{S_EX}:{S_EX+1}]')
        a.label('L_fin_skip')
        if self.stamps:
            self.stamp()
            a.e('s_waitcnt vmcnt(0) lgkmcnt(0)')
            a.e(f's_lshl_b32 s{S_T}, s2, 2')
            a.e(f's_add_u32 s{S_T}, s{S_T}, s{S_W}')
            a.e(f's_lshl_b32 s{S_T}, s{S_T}, 7')
            a.e(f's_add_u32 s{S_T}, s{S_T}, {WS_TS}')
            a.e(f'v_mov_b32 v{V_T1}, s{S_T}')
            a.e('s_mov_b64 exec, 1')
            for i in range(0, self.nstamp, 2):
                for k in range(4):
                    src = S_TS + 2*i + k
                    if i*2 + k < 2*self.nstamp:
                        a.e(f'v_mov_b32 v{V_QF+k}, s{src}')
                    else:
                        a.e(f'v_mov_b32 v{V_QF+k}, 0')
                a.e(f'buffer_store_dwordx4 {vr(V_QF)}, v{V_T1}, {sr(R_WS)}, 0 offen offset:{16*i//2*2//2*1 if False else 8*i}')
                a.e('s_nop 1')
            a.e('s_mov_b64 exec, -1')
            a.e(f's_lshl_b32 s{S_T}, s2, 2')
            a.e(f's_add_u32 s{S_T}, s{S_T}, s{S_W}')
            a.e(f's_lshl_b32 s{S_T}, s{S_T}, 8')
            a.e(f's_add_u32 s{S_T}, s{S_T}, {WS_TS + (1<<18)}')
            a.e(f'v_lshlrev_b32 v{V_T2}, 2, v{V_LANE}')
            a.e(f'v_add_u32 v{V_T2}, s{S_T}, v{V_T2}')
            a.e(f'buffer_store_dword v250, v{V_T2}, {sr(R_WS)}, 0 offen')
            a.e('s_mov_b64 exec, 1')
            a.e('s_getreg_b32 s98, hwreg(HW_REG_XCC_ID)')
            a.e('s_getreg_b32 s99, hwreg(HW_REG_HW_ID)')
            a.e(f'v_mov_b32 v{V_QF}, s98')
            a.e(f'v_mov_b32 v{V_QF+1}, s99')
            a.e(f'buffer_store_dwordx2 {vr(V_QF,2)}, v{V_T1}, {sr(R_WS)}, 0 offen offset:64')
            a.e('s_waitcnt vmcnt(0)')
        a.label('L_end')
        a.e('s_endpgm')

    def build(self):
        self.prologue()
        self.k_phase()
        self.midpoint()
        self.v_phase()
        self.tail()
        head = f'''; Kernarg layout (64 bytes, pointers only, base s[0:1]):
; @launch grid=(256,1,1) block=(256,1,1) lds={LDS_BYTES}
.amdgcn_target "amdgcn-amd-amdhsa--gfx950"
.text
.globl {KNAME}
.p2align 8
.type {KNAME},@function
{KNAME}:
'''
        tailtxt = f'''.section .rodata,"a"
.p2align 6
.amdhsa_kernel {KNAME}
  .amdhsa_next_free_vgpr 512
  .amdhsa_next_free_sgpr 102
  .amdhsa_accum_offset 256
  .amdhsa_group_segment_fixed_size 0
  .amdhsa_kernarg_size 64
  .amdhsa_user_sgpr_count 2
  .amdhsa_user_sgpr_kernarg_segment_ptr 1
  .amdhsa_system_sgpr_workgroup_id_x 1
.end_amdhsa_kernel
'''
        return head + self.a.text() + tailtxt

if __name__ == '__main__':
    ap = argparse.ArgumentParser()
    ap.add_argument('-o', default='/dev/stdout')
    ap.add_argument('--PD', type=int, default=8)
    ap.add_argument('--G', type=int, default=4)
    ap.add_argument('--LAG', type=int, default=14)
    ap.add_argument('--ninit', type=int, default=3)
    ap.add_argument('--stamps', action='store_true')
    ap.add_argument('--wflags', default='')
    ap.add_argument('--kvflags', default='nt')
    ap.add_argument('--dbg', default='')
    ap.add_argument('--ainit', type=int, default=0)
    ap.add_argument('--wpg', type=int, default=4)
    ap.add_argument('--kfirst', type=int, default=8)
    ap.add_argument('--kper', type=float, default=1.0)
    ap.add_argument('--wqflags', default=None)
    ap.add_argument('--kflags', default=None)
    ap.add_argument('--vflags', default=None)
    ap.add_argument('--map', type=int, default=0)
    x = ap.parse_args()
    k = Kernel(PD=x.PD, G=x.G, LAG=x.LAG, stamps=x.stamps, wflags=x.wflags, kvflags=x.kvflags, ninit=x.ninit, dbg=x.dbg, ainit=x.ainit, wpg=x.wpg, kfirst=x.kfirst, kper=x.kper, wqflags=x.wqflags, kflags=x.kflags, vflags=x.vflags, map=x.map)
    open(x.o, 'w').write(k.build())
```

```python
import sys, argparse

KNAME = 'standalone__mha_block_cached__decode_kernel'

class Asm:
    def __init__(self):
        self.L = []
        self.vm = []
    def e(self, s):
        for ln in s.split('\n'):
            self.L.append('    ' + ln.strip())
    def label(self, s):
        self.L.append(s + ':')
    def c(self, s):
        self.L.append('    ; ' + s)
    def vmop(self, tag, s):
        if len(self.vm) >= 63:
            self.e('s_waitcnt vmcnt(62)')
            self.vm = self.vm[-62:]
        self.e(s)
        self.vm.append(tag)
    def vmwait(self, tag):
        if tag not in self.vm:
            return False
        i = self.vm.index(tag)
        n = len(self.vm) - 1 - i
        self.e(f's_waitcnt vmcnt({n})')
        self.vm = self.vm[i + 1:]
        return True
    def vmdrain(self):
        self.e('s_waitcnt vmcnt(0)')
        self.vm = []
    def text(self):
        return '\n'.join(self.L) + '\n'

S_W = 3
S_X, S_K, S_V, S_WQ, S_WO, S_OUT, S_DBG, S_WS = 4, 6, 8, 10, 12, 14, 16, 18
R_K, R_V, R_WQ, R_WO, R_X, R_WS, R_OUT = 20, 24, 28, 32, 36, 40, 44
S_H, S_B, S_SP, S_ROW = 48, 49, 50, 51
S_BASE, S_T, S_CNT, S_C = 52, 53, 54, 55
S_MT = 56
S_EX = 64
S_WG = 66
S_TS = 82
V_TID, V_LANE, V_OK, V_OV, V_OWQ, V_OWO = 0, 1, 2, 3, 4, 5
V_T0, V_LDS, V_MAX, V_L, V_SC, V_E, V_PB, V_T, V_T1, V_T2 = 6, 7, 8, 9, 10, 11, 12, 13, 14, 15
V_D0, V_D1 = 16, 20
V_MASK = 24
V_SEL = 28
V_BX = 36
V_XD = 44
V_BQ = 60
V_RING = 92
V_INIT = 124
V_QF = 220
V_Y = 124
V_FIN = 92
L_PART, L_BF, L_MAX, L_LSUM, L_FLAG, L_Y, L_SC = 0x0000, 0x1000, 0x1200, 0x1210, 0x1220, 0x1400, 0x4000
LDS_BYTES = 0xC000
WS_ML = 0x80000
WS_TS = 3 << 20

def vr(b, n=4):
    return f'v[{b}:{b+n-1}]'
def ar(b, n=4):
    return f'a[{b}:{b+n-1}]'
def sr(b, n=4):
    return f's[{b}:{b+n-1}]'

class Kernel:
    def __init__(self, PD=8, G=4, LAG=14, stamps=False, wflags='', kvflags='nt', ninit=3, dbg='', ainit=0, wpg=4, kfirst=8, kper=1.0, wqflags=None, kflags=None, vflags=None, map=0, PDK=None, PDK2=None, PDV=None, PDE=''):
        self.PDK = PD if PDK is None else PDK
        self.PDK2 = self.PDK if PDK2 is None else PDK2
        self.PDV = PD if PDV is None else PDV
        self.PDE = [float(t) for t in PDE.split(',') if t]
        self.map = map
        self.kflags = kvflags if kflags is None else kflags
        self.vflags = kvflags if vflags is None else vflags
        self.dbg = dbg
        self.ainit, self.wpg, self.kfirst, self.kper = ainit, wpg, kfirst, kper
        self.wqflags = wflags if wqflags is None else wqflags
        self.PD, self.G, self.LAG, self.stamps = PD, G, LAG, stamps
        self.wflags, self.kvflags, self.ninit = wflags, kvflags, ninit
        self.a = Asm()
        self.nstamp = 0

    def stamp(self, pro=False):
        if self.stamps and (pro == ('pro' in self.dbg) or self.nstamp == 0) and self.nstamp < 8:
            r = S_TS + 2 * self.nstamp
            self.a.e(f's_memrealtime s[{r}:{r+1}]')
            self.nstamp += 1

    def tl(self):
        if self.stamps:
            a = self.a
            a.e('s_memrealtime s[98:99]')
            a.e('s_waitcnt lgkmcnt(0)')
            a.e('v_writelane_b32 v250, s98, m0')
            a.e('s_add_u32 m0, m0, 1')

    def target(self, s, PD):
        base = int(PD)
        frac = PD - base
        extra = 1 if int((s + 1) * frac + 1e-9) > int(s * frac + 1e-9) else 0
        return min(s + base + extra, s + 8)

    def ring_issue(self, s, PD, cur, nxt):
        T = self.target(s, PD)
        while self.issued < T:
            n = self.issued + 1
            if n < 8:
                kind, base0 = cur
                self.kvload(kind, n, vr(V_RING + 4*n), 0, tag=('ring', n))
            elif nxt is None:
                break
            elif nxt == 'V0':
                self.kvload('V', n - 8, vr(V_RING + 4*(n-8)), 0, base=None, tag=('ring', n - 8))
            else:
                self.kvload(nxt, n - 8, vr(V_RING + 4*(n-8)), 32768, tag=('ring', n - 8))
            self.issued = n

    def blockoff(self, t):
        if self.G == 2: return t * 8192
        if self.G == 4: return (t >> 1) * 16384 + (t & 1) * 2048
        if self.G == 8: return t * 2048
    def waveshift(self):
        return {2: 11, 4: 12, 8: 13}[self.G]

    def kvload(self, kind, slot, dst, extra, base=S_BASE, tag=None):
        a = self.a
        t, j = slot >> 1, slot & 1
        off = extra + self.blockoff(t) + 256 * j
        hi, imm = off & ~0xFFF, off & 0xFFF
        srd, vo = (R_K, V_OK) if kind == 'K' else (R_V, V_OV)
        if base is None:
            if hi:
                a.e(f's_mov_b32 s{S_T}, {hi}')
                so = f's{S_T}'
            else:
                so = '0'
        elif hi:
            a.e(f's_add_u32 s{S_T}, s{base}, {hi}')
            so = f's{S_T}'
        else:
            so = f's{base}'
        fl = self.kflags if kind == 'K' else self.vflags
        a.vmop(tag, f'buffer_load_dwordx4 {dst}, v{vo}, {sr(srd)}, {so} offen offset:{imm} {fl}')

    def prologue(self):
        a = self.a
        a.e(f's_cmp_ge_u32 s2, 256')
        a.e('s_cbranch_scc1 L_end')
        a.e(f's_load_dwordx16 s[4:19], s[0:1], 0')
        self.stamp()
        a.e(f'v_lshrrev_b32 v{V_T0}, 6, v{V_TID}')
        a.e(f'v_and_b32 v{V_LANE}, 63, v{V_TID}')
        a.e(f'v_readfirstlane_b32 s{S_W}, v{V_T0}')
        a.c('workgroup id -> head (two heads per XCD under round-robin placement), batch, split')
        if self.map == 0:
            a.e(f's_and_b32 s{S_H}, s2, 7')
            a.e(f's_lshl_b32 s{S_H}, s{S_H}, 1')
            a.e(f's_bfe_u32 s{S_T}, s2, 0x10003')
            a.e(f's_add_u32 s{S_H}, s{S_H}, s{S_T}')
            a.e(f's_bfe_u32 s{S_SP}, s2, 0x20004')
            a.e(f's_lshr_b32 s{S_B}, s2, 6')
        else:
            a.e(f's_lshr_b32 s{S_H}, s2, 4')
            a.e(f's_and_b32 s{S_SP}, s2, 3')
            a.e(f's_bfe_u32 s{S_B}, s2, 0x20002')
        a.e(f's_lshl_b32 s{S_ROW}, s{S_B}, 6')
        a.e(f's_lshl_b32 s{S_T}, s{S_H}, 2')
        a.e(f's_add_u32 s{S_ROW}, s{S_ROW}, s{S_T}')
        a.e(f's_add_u32 s{S_ROW}, s{S_ROW}, s{S_SP}')
        a.e(f's_mov_b32 s{S_C}, 0x3db8aa3b')
        if self.stamps:
            a.e('s_mov_b32 m0, 0')
        g, m, c, kk = V_T, V_T1, V_T2, V_E
        a.e(f'v_lshrrev_b32 v{g}, 4, v{V_LANE}')
        a.e(f'v_and_b32 v{m}, 15, v{V_LANE}')
        a.e(f'v_and_b32 v{c}, 3, v{V_LANE}')
        a.e(f'v_bfe_u32 v{kk}, v{V_LANE}, 2, 2')
        a.e(f'v_lshlrev_b32 v{V_OK}, 9, v{kk}')
        a.e(f'v_lshl_add_u32 v{V_OK}, v{g}, 6, v{V_OK}')
        a.e(f'v_lshl_add_u32 v{V_OK}, v{c}, 4, v{V_OK}')
        a.e(f'v_lshlrev_b32 v{V_OV}, 9, v{g}')
        a.e(f'v_lshl_add_u32 v{V_OV}, v{m}, 4, v{V_OV}')
        a.e(f's_lshl_b32 s{S_T}, s{S_W}, {self.waveshift()}')
        a.e(f'v_add_u32 v{V_OK}, s{S_T}, v{V_OK}')
        a.e(f'v_add_u32 v{V_OV}, s{S_T}, v{V_OV}')
        a.e(f's_mul_i32 s{S_T}, s{S_W}, {112*8192}')
        a.e(f'v_mul_u32_u24 v{V_OWQ}, {28*8192}, v{g}')
        a.e(f'v_lshl_add_u32 v{V_OWQ}, v{m}, 4, v{V_OWQ}')
        a.e(f'v_add_u32 v{V_OWQ}, s{S_T}, v{V_OWQ}')
        a.e(f's_mul_i32 s{S_T}, s{S_W}, {64*896}')
        a.e(f'v_mul_u32_u24 v{V_OWO}, {16*896}, v{g}')
        a.e(f'v_lshl_add_u32 v{V_OWO}, v{m}, 4, v{V_OWO}')
        a.e(f'v_add_u32 v{V_OWO}, s{S_T}, v{V_OWO}')
        a.e(f's_mul_i32 s{S_T}, s{S_W}, 224')
        a.e(f's_mul_i32 s{S_CNT}, s{S_B}, 896')
        a.e(f's_add_u32 s{S_T}, s{S_T}, s{S_CNT}')
        a.e(f'v_mul_u32_u24 v{V_T0}, 56, v{g}')
        a.e(f'v_add_u32 v{V_T0}, s{S_T}, v{V_T0}')
        a.e('s_waitcnt lgkmcnt(0)')
        a.e(f's_lshl_b32 s{S_T}, s{S_B}, 4')
        a.e(f's_add_u32 s{S_T}, s{S_T}, s{S_H}')
        a.e(f's_lshl_b32 s{S_T}, s{S_T}, 2')
        a.e(f's_add_u32 s{S_T}, s{S_T}, s{S_SP}')
        a.e(f's_lshl_b32 s{S_CNT}, s{S_T}, 20')
        for (p, r) in ((S_K, R_K), (S_V, R_V)):
            a.e(f's_add_u32 s{r}, s{p}, s{S_CNT}')
            a.e(f's_addc_u32 s{r+1}, s{p+1}, 0')
            a.e(f's_mov_b32 s{r+2}, 0x100000')
            a.e(f's_mov_b32 s{r+3}, 0x20000')
        a.e(f's_mov_b32 s{R_X}, s{S_X}')
        a.e(f's_mov_b32 s{R_X+1}, s{S_X+1}')
        a.e(f's_mov_b32 s{R_X+2}, 3584')
        a.e(f's_mov_b32 s{R_X+3}, 0x20000')
        a.e(f's_lshl_b32 s{S_T}, s{S_H}, 9')
        a.e(f's_add_u32 s{R_WQ}, s{S_WQ}, s{S_T}')
        a.e(f's_addc_u32 s{R_WQ+1}, s{S_WQ+1}, 0')
        a.e(f's_sub_u32 s{R_WQ+2}, {448*8192}, s{S_T}')
        a.e(f's_mov_b32 s{R_WQ+3}, 0x20000')
        a.e(f's_mul_i32 s{S_T}, s{S_H}, {256*896}')
        a.e(f's_add_u32 s{R_WO}, s{S_WO}, s{S_T}')
        a.e(f's_addc_u32 s{R_WO+1}, s{S_WO+1}, 0')
        a.e(f's_mov_b32 s{R_WO+2}, {256*896}')
        a.e(f's_mov_b32 s{R_WO+3}, 0x20000')
        for i, (n, nm) in enumerate(((4, 'x4'), (4, 'x4'), (4, 'x4'), (2, 'x2'))):
            a.vmop(('x', i), f'buffer_load_dword{nm} {vr(V_XD+4*i, n)}, v{V_T0}, {sr(R_X)}, 0 offen offset:{16*i}')
        a.e(f's_mov_b32 s{R_WS}, s{S_WS}')
        a.e(f's_mov_b32 s{R_WS+1}, s{S_WS+1}')
        a.e(f's_mov_b32 s{R_WS+2}, 0x400000')
        a.e(f's_mov_b32 s{R_WS+3}, 0x20000')
        a.e(f's_mov_b32 s{R_OUT}, s{S_OUT}')
        a.e(f's_mov_b32 s{R_OUT+1}, s{S_OUT+1}')
        a.e(f's_mov_b32 s{R_OUT+2}, 3584')
        a.e(f's_mov_b32 s{R_OUT+3}, 0x20000')

        ninit = self.ninit
        ntot = ninit + self.ainit
        def initreg(gi, s):
            if gi < ninit: return vr(V_INIT + 32 * gi + 4 * s)
            return ar(224 + 4 * s)
        self.initreg = initreg
        kq = [('ring', s) for s in range(8)] + [(('init', gi), s) for gi in range(ntot) for s in range(8)]
        def k_issue(n):
            for _ in range(n):
                if not kq: return
                grp, s = kq.pop(0)
                if grp == 'ring':
                    self.kvload('K', s, vr(V_RING + 4 * s), ntot * 32768, base=None, tag=('ring', s))
                else:
                    gi = grp[1]
                    self.kvload('K', s, initreg(gi, s), gi * 32768, base=None, tag=('init', gi, s))
        def wq_issue(u):
            a.e(f's_mov_b32 s{S_T}, {u*8192}')
            for j in range(2):
                a.vmop(('wq', u, j), f'buffer_load_dwordx4 {ar(8*u+4*j)}, v{V_OWQ}, {sr(R_WQ)}, s{S_T} offen offset:{256*j} {self.wqflags}')
        def consume(u):
            if u == 0:
                a.vmwait(('x', 3))
            st = V_BX + 4 * (u & 1)
            xd = V_XD + (u >> 1)
            for jj in range(4):
                a.e(f'v_perm_b32 v{st+jj}, v{xd}, v{xd}, v{V_SEL + 2*jj + (u & 1)}')
            a.vmwait(('wq', u, 1))
            if u in (0, 7, 14, 21, 27): self.stamp(True)
            a.e('s_nop 1')
            for j in range(2):
                d = V_D0 if j == 0 else V_D1
                cacc = '0' if u == 0 else vr(d)
                a.e(f'v_mfma_f32_16x16x32_bf16 {vr(d)}, {ar(8*u+4*j)}, {vr(st)}, {cacc}')
        k_issue(self.kfirst)
        acc = 0.0
        done = 0
        for u in range(28):
            wq_issue(u)
            acc += self.kper
            while acc >= 1.0:
                k_issue(1); acc -= 1.0
            if u == 1:
                self.lane_consts()
            if u >= self.LAG:
                consume(done); done += 1
        k_issue(64)
        while done < 28:
            consume(done); done += 1
        self.stamp()
        self.stamp(True)
        n8 = V_T1
        a.e(f'v_lshrrev_b32 v{V_T}, 4, v{V_LANE}')
        a.e(f'v_lshlrev_b32 v{V_T}, 7, v{V_T}')
        a.e(f'v_lshl_add_u32 v{V_T}, v{V_T1}, 2, v{V_T}')
        a.e(f's_lshl_b32 s{S_T}, s{S_W}, 10')
        a.e(f'v_add_u32 v{V_QF}, s{S_T}, v{V_T}')
        a.e(f's_mov_b32 exec_lo, 0x00ff00ff\ns_mov_b32 exec_hi, 0x00ff00ff')
        a.e('s_nop 7')
        for j in range(2):
            for r in range(4):
                d = (V_D0 if j == 0 else V_D1) + r
                a.e(f'ds_write_b32 v{V_QF}, v{d} offset:{L_PART + j*512 + r*32}')
        a.e('s_mov_b64 exec, -1')
        a.e('s_waitcnt lgkmcnt(0)\ns_barrier')
        a.e(f'v_lshlrev_b32 v{V_T}, 2, v{V_TID}')
        for w in range(4):
            a.e(f'ds_read_b32 v{V_QF+w}, v{V_T} offset:{L_PART + w*1024}')
        a.e(f'v_lshlrev_b32 v{V_T2}, 1, v{V_TID}')
        a.e('s_waitcnt lgkmcnt(0)')
        a.e(f'v_add_f32 v{V_QF}, v{V_QF}, v{V_QF+1}')
        a.e(f'v_add_f32 v{V_QF+2}, v{V_QF+2}, v{V_QF+3}')
        a.e(f'v_add_f32 v{V_QF}, v{V_QF}, v{V_QF+2}')
        a.e(f'v_cvt_pk_bf16_f32 v{V_QF}, v{V_QF}, v{V_QF}')
        a.e(f'ds_write_b16 v{V_T2}, v{V_QF} offset:{L_BF}')
        a.e(f'v_lshrrev_b32 v{V_T}, 4, v{V_LANE}')
        a.e(f'v_lshlrev_b32 v{V_T}, 6, v{V_T}')
        a.e(f'v_and_b32 v{V_T2}, 3, v{V_LANE}')
        a.e(f'v_lshl_add_u32 v{V_T}, v{V_T2}, 4, v{V_T}')
        a.e('s_waitcnt lgkmcnt(0)\ns_barrier')
        for j in range(2):
            a.e(f'ds_read_b128 {vr(V_QF+4*j)}, v{V_T} offset:{L_BF + 256*j}')
        for t in range(4):
            mk = 0x000F000F << (4 * t)
            a.e(f's_mov_b32 s{S_MT+2*t}, {mk:#x}\ns_mov_b32 s{S_MT+2*t+1}, {mk:#x}')
        a.e(f's_lshl_b32 s{S_T}, s{S_W}, 13')
        a.e(f's_add_u32 s{S_T}, s{S_T}, {L_SC}')
        a.e(f'v_lshlrev_b32 v{V_LDS}, 2, v{V_LANE}')
        a.e(f'v_add_u32 v{V_LDS}, s{S_T}, v{V_LDS}')
        a.e(f'v_mov_b32 v{V_MAX}, 0xff800000')
        a.e('s_waitcnt lgkmcnt(0)')
        for t in range(4):
            for j in range(2):
                for r in range(4):
                    a.e(f'v_cndmask_b32 v{V_BQ + 4*(2*t+j) + r}, 0, v{V_QF+4*j+r}, s[{S_MT+2*t}:{S_MT+2*t+1}]')
        a.e('s_nop 1')
        self.stamp()
        self.stamp(True)

    def lane_consts(self):
        a = self.a
        n = V_T1
        a.e(f'v_and_b32 v{V_T2}, 1, v{n}')
        a.e(f'v_cmp_eq_u32 vcc, 1, v{V_T2}')
        a.e(f'v_mov_b32 v{V_E}, 0x0c0c0100\nv_mov_b32 v{V_PB}, 0x01000c0c')
        a.e(f'v_cndmask_b32 v{V_E}, v{V_E}, v{V_PB}, vcc')
        a.e(f'v_mov_b32 v{V_PB}, 0x0c0c0302\nv_mov_b32 v{V_SC}, 0x03020c0c')
        a.e(f'v_cndmask_b32 v{V_PB}, v{V_PB}, v{V_SC}, vcc')
        a.e(f'v_mov_b32 v{V_SC}, 0x0000ffff\nv_mov_b32 v{V_L}, 0xffff0000')
        a.e(f'v_cndmask_b32 v{V_SC}, v{V_SC}, v{V_L}, vcc')
        a.e(f'v_lshrrev_b32 v{V_T2}, 1, v{n}')
        a.e(f'v_mov_b32 v{V_L}, 0x0c0c0c0c')
        for jj in range(4):
            a.e(f'v_cmp_eq_u32 vcc, {jj}, v{V_T2}')
            a.e('s_nop 1')
            a.e(f'v_cndmask_b32 v{V_SEL+2*jj}, v{V_L}, v{V_E}, vcc')
            a.e(f'v_cndmask_b32 v{V_SEL+2*jj+1}, v{V_L}, v{V_PB}, vcc')
            a.e(f'v_cndmask_b32 v{V_MASK+jj}, 0, v{V_SC}, vcc')
        a.e(f'v_mov_b32 v{V_L}, 0')

    def score_finish(self, off):
        a = self.a
        a.e('s_nop 7')
        dpp = 'row_mask:0xf bank_mask:0xf'
        a.e(f'v_mov_b32_dpp v{V_T}, v{V_D0} quad_perm:[0,0,0,0] {dpp}')
        a.e(f'v_mov_b32_dpp v{V_T1}, v{V_D0+2} quad_perm:[2,2,2,2] {dpp}')
        a.e('s_nop 0')
        a.e(f'v_add_f32_dpp v{V_T}, v{V_D0+1}, v{V_T} quad_perm:[1,1,1,1] {dpp}')
        a.e(f'v_add_f32_dpp v{V_T1}, v{V_D0+3}, v{V_T1} quad_perm:[3,3,3,3] {dpp}')
        a.e(f'v_add_f32 v{V_T}, v{V_T}, v{V_T1}')
        a.e(f'ds_write_b32 v{V_LDS}, v{V_T} offset:{off}')
        a.e(f'v_max_f32 v{V_MAX}, v{V_MAX}, v{V_T}')

    def wo_issue(self):
        if not self.woq or 'nowo' in self.dbg: return
        z = self.woq.pop(0)
        u, cb = z >> 2, z & 3
        a = self.a
        a.e(f's_mov_b32 s{S_T}, {u*896}')
        a.vmop(('wo', z), f'buffer_load_dwordx4 {ar(4*z)}, v{V_OWO}, {sr(R_WO)}, s{S_T} offen offset:{224*cb} {self.wflags}')

    def k_group(self, src, nxt, scoff, first_ring=False, nwo=0, PD=None):
        a = self.a
        PD = self.PDK if PD is None else PD
        wo_at = {0: [], 1: [3], 2: [1, 5], 3: [1, 4, 6], 4: [1, 3, 5, 7], 8: list(range(8))}[nwo]
        for s in range(8):
            a.vmwait(src['tag'](s))
            cacc = '0' if s == 0 else vr(V_D0)
            a.e(f'v_mfma_f32_16x16x32_bf16 {vr(V_D0)}, {src["reg"](s)}, {vr(V_BQ + 4*s)}, {cacc}')
            if nxt is not None:
                self.ring_issue(s, PD, ('K', 0), 'K' if nxt == 'K' else 'V0')
            if s in wo_at:
                self.wo_issue()
        if nxt is not None:
            self.issued -= 8
        self.score_finish(scoff)
        self.tl()

    def k_phase(self):
        a = self.a
        ntot = self.ninit + self.ainit
        self.woq = list(range(64))
        ring = {'reg': lambda s: vr(V_RING + 4*s), 'tag': lambda s: ('ring', s)}
        a.e(f's_mov_b32 s{S_BASE}, {ntot*32768}')
        a.e(f'v_mov_b32 v{V_PB}, v{V_LDS}')
        self.issued = 7
        self.k_group(ring, 'K', ntot * 256, first_ring=True)
        a.e(f's_add_u32 s{S_BASE}, s{S_BASE}, 32768')
        for gi in range(ntot):
            self.k_group({'reg': (lambda s, gi=gi: self.initreg(gi, s)), 'tag': (lambda s, gi=gi: ('init', gi, s))}, None, gi * 256)
        g = ntot + 1
        while self.woq and 'nowo' not in self.dbg:
            assert g <= 30
            self.k_group(ring, 'K', g * 256, nwo=self.wpg)
            a.e(f's_add_u32 s{S_BASE}, s{S_BASE}, 32768')
            g += 1
        first = True
        while first or any(t[0] != 'ring' for t in a.vm):
            first = False
            assert g <= 30
            self.k_group(ring, 'K', g * 256, PD=self.PDK2)
            a.e(f's_add_u32 s{S_BASE}, s{S_BASE}, 32768')
            g += 1
        a.e(f'v_add_u32 v{V_LDS}, {g*256}, v{V_LDS}')
        if g <= 30:
            a.e(f's_mov_b32 s{S_CNT}, {31 - g}')
            entry = (list(a.vm), self.issued)
            a.label('L_kloop')
            self.k_group(ring, 'K', 0, PD=self.PDK2)
            assert (a.vm, self.issued) == entry, (a.vm, entry)
            a.e(f'v_add_u32 v{V_LDS}, 256, v{V_LDS}')
            a.e(f's_add_u32 s{S_BASE}, s{S_BASE}, 32768')
            a.e(f's_sub_u32 s{S_CNT}, s{S_CNT}, 1')
            a.e(f's_cmp_lg_u32 s{S_CNT}, 0')
            a.e('s_cbranch_scc1 L_kloop')
        self.k_group(ring, 'V', 0, PD=self.PDV)
        a.e(f'v_mov_b32 v{V_LDS}, v{V_PB}')
        self.stamp()

    def midpoint(self):
        a = self.a
        v = V_MAX
        for ctl in ('row_ror:4 row_mask:0xf', 'row_ror:8 row_mask:0xf', 'row_bcast:15 row_mask:0xa', 'row_bcast:31 row_mask:0xc'):
            a.e('s_nop 1')
            a.e(f'v_max_f32_dpp v{v}, v{v}, v{v} {ctl} bank_mask:0xf')
        a.e(f's_lshl_b32 s{S_T}, s{S_W}, 2')
        a.e(f'v_mov_b32 v{V_T}, s{S_T}')
        a.e('s_mov_b32 exec_lo, 0\ns_mov_b32 exec_hi, 0x80000000')
        a.e(f'ds_write_b32 v{V_T}, v{v} offset:{L_MAX}')
        a.e('s_mov_b64 exec, -1')
        a.e(f'v_mov_b32 v{V_T}, 0')
        a.e('s_waitcnt lgkmcnt(0)\ns_barrier')
        a.e(f'ds_read_b128 {vr(V_QF)}, v{V_T} offset:{L_MAX}')
        a.e(f'ds_read_b32 v{V_SC}, v{V_LDS}')
        a.e('s_waitcnt lgkmcnt(0)')
        a.e(f'v_max3_f32 v{V_MAX}, v{V_QF}, v{V_QF+1}, v{V_QF+2}')
        a.e(f'v_max_f32 v{V_MAX}, v{V_MAX}, v{V_QF+3}')
        a.e(f'v_mul_f32 v{V_T2}, s{S_C}, v{V_MAX}')
        a.e(f'v_sub_f32 v{V_T2}, 0, v{V_T2}')

    def v_group(self, last, PD=None):
        a = self.a
        PD = self.PDV if PD is None else PD
        a.e('s_waitcnt lgkmcnt(0)')
        a.e(f'v_fma_f32 v{V_E}, v{V_SC}, s{S_C}, v{V_T2}')
        if not last:
            a.e(f'ds_read_b32 v{V_SC}, v{V_LDS} offset:256')
        a.e(f'v_exp_f32 v{V_E}, v{V_E}')
        a.e('s_nop 0')
        a.e(f'v_cvt_pk_bf16_f32 v{V_PB}, v{V_E}, v{V_E}')
        a.e(f'v_add_f32 v{V_L}, v{V_L}, v{V_E}')
        a.e('s_nop 0')
        def build(t):
            st = V_BX + 4 * (t & 1)
            for jj in range(4):
                a.e(f'v_and_b32_dpp v{st+jj}, v{V_PB}, v{V_MASK+jj} row_newbcast:{4*t} row_mask:0xf bank_mask:0xf')
        build(0)
        a.e('s_nop 0')
        for t in range(4):
            st = V_BX + 4 * (t & 1)
            for j in range(2):
                s = 2 * t + j
                a.vmwait(('ring', s))
                d = V_D0 if j == 0 else V_D1
                a.e(f'v_mfma_f32_16x16x32_bf16 {vr(d)}, {vr(V_RING + 4*s)}, {vr(st)}, {vr(d)}')
                self.ring_issue(s, PD, ('V', 0), None if last else 'V')
                if j == 0 and t < 3:
                    build(t + 1)
        self.issued -= 8
        self.tl()

    def v_step(self):
        a = self.a
        a.e(f'v_add_u32 v{V_LDS}, 256, v{V_LDS}')
        a.e(f's_add_u32 s{S_BASE}, s{S_BASE}, 32768')

    def v_phase(self):
        a = self.a
        nend = len(self.PDE)
        a.e(f's_mov_b32 s{S_BASE}, 0')
        a.e(f's_mov_b32 s{S_CNT}, {31 - nend}')
        for r in range(8):
            a.e(f'v_mov_b32 v{V_D0+r}, 0')
        entry = (list(a.vm), self.issued)
        a.label('L_vloop')
        self.v_group(False)
        assert (a.vm, self.issued) == entry, (a.vm, entry)
        self.v_step()
        a.e(f's_sub_u32 s{S_CNT}, s{S_CNT}, 1')
        a.e(f's_cmp_lg_u32 s{S_CNT}, 0')
        a.e('s_cbranch_scc1 L_vloop')
        for pd in self.PDE:
            self.v_group(False, PD=pd)
            self.v_step()
        self.v_group(True, PD=(self.PDE[-1] if nend else None))
        self.stamp()

    def tail(self):
        a = self.a
        v = V_L
        for ctl in ('row_ror:4 row_mask:0xf', 'row_ror:8 row_mask:0xf', 'row_bcast:15 row_mask:0xa', 'row_bcast:31 row_mask:0xc'):
            a.e('s_nop 1')
            a.e(f'v_add_f32_dpp v{v}, v{v}, v{v} {ctl} bank_mask:0xf')
        a.e(f's_lshl_b32 s{S_T}, s{S_W}, 2')
        a.e(f'v_mov_b32 v{V_T}, s{S_T}')
        a.e('s_mov_b32 exec_lo, 0\ns_mov_b32 exec_hi, 0x80000000')
        a.e(f'ds_write_b32 v{V_T}, v{v} offset:{L_LSUM}')
        a.e('s_mov_b64 exec, -1')
        a.e(f'v_lshrrev_b32 v{V_T}, 4, v{V_LANE}')
        a.e(f'v_lshlrev_b32 v{V_T}, 7, v{V_T}')
        a.e(f'v_and_b32 v{V_T1}, 15, v{V_LANE}')
        a.e(f'v_lshl_add_u32 v{V_T}, v{V_T1}, 2, v{V_T}')
        a.e(f's_lshl_b32 s{S_T}, s{S_W}, 10')
        a.e(f'v_add_u32 v{V_QF}, s{S_T}, v{V_T}')
        a.e(f's_mov_b32 exec_lo, 0x00ff00ff\ns_mov_b32 exec_hi, 0x00ff00ff')
        for j in range(2):
            for r in range(4):
                d = (V_D0 if j == 0 else V_D1) + r
                a.e(f'ds_write_b32 v{V_QF}, v{d} offset:{L_PART + j*512 + r*32}')
        a.e('s_mov_b64 exec, -1')
        a.e('s_waitcnt lgkmcnt(0)\ns_barrier')
        a.e(f'v_lshlrev_b32 v{V_E}, 2, v{V_TID}')
        for w in range(4):
            a.e(f'ds_read_b32 v{V_QF+w}, v{V_E} offset:{L_PART + w*1024}')
        a.e(f'v_lshlrev_b32 v{V_SC}, 1, v{V_TID}')
        a.e(f'v_lshrrev_b32 v{V_PB}, 4, v{V_LANE}')
        a.e(f'v_lshlrev_b32 v{V_PB}, 5, v{V_PB}')
        a.e(f's_lshl_b32 s{S_T}, s{S_W}, 7')
        a.e(f'v_add_u32 v{V_PB}, s{S_T}, v{V_PB}')
        a.e('s_waitcnt lgkmcnt(0)')
        a.e(f'v_add_f32 v{V_QF}, v{V_QF}, v{V_QF+1}')
        a.e(f'v_add_f32 v{V_QF+2}, v{V_QF+2}, v{V_QF+3}')
        a.e(f'v_add_f32 v{V_QF}, v{V_QF}, v{V_QF+2}')
        a.e(f'v_cvt_pk_bf16_f32 v{V_QF}, v{V_QF}, v{V_QF}')
        a.e(f'ds_write_b16 v{V_SC}, v{V_QF} offset:{L_BF}')
        a.e('s_waitcnt lgkmcnt(0)')
        for i in range(2):
            a.e(f'ds_read_b128 {vr(V_XD+4*i)}, v{V_PB} offset:{L_BF + 16*i}')
        a.e('s_waitcnt lgkmcnt(0)')
        def build(u):
            st = V_BX + 4 * (u & 1)
            xd = V_XD + (u >> 1)
            for jj in range(4):
                a.e(f'v_perm_b32 v{st+jj}, v{xd}, v{xd}, v{V_SEL + 2*jj + (u & 1)}')
        build(0)
        a.e('s_nop 1')
        for u in range(16):
            st = V_BX + 4 * (u & 1)
            for cb in range(4):
                y = V_Y + 4 * cb
                cacc = '0' if u == 0 else vr(y)
                a.e(f'v_mfma_f32_16x16x32_bf16 {vr(y)}, {ar(4*(4*u+cb))}, {vr(st)}, {cacc}')
                if cb == 0 and u < 15:
                    build(u + 1)
        a.e(f's_lshl_b32 s{S_T}, s{S_W}, 11')
        a.e(f'v_add_u32 v{V_QF}, s{S_T}, v{V_T}')
        a.e(f's_mov_b32 exec_lo, 0x00ff00ff\ns_mov_b32 exec_hi, 0x00ff00ff')
        a.e('s_nop 7')
        for r in range(4):
            if r == 2:
                a.e('s_mov_b32 exec_hi, 0x000000ff')
            for cb in range(4):
                a.e(f'ds_write_b32 v{V_QF}, v{V_Y+4*cb+r} offset:{L_Y + cb*448 + r*32}')
        a.e('s_mov_b64 exec, -1')
        a.e('s_waitcnt lgkmcnt(0)\ns_barrier')
        self.stamp()
        a.e(f's_cmp_lg_u32 s{S_W}, 0')
        a.e('s_cbranch_scc1 L_pubdone')
        a.e(f'v_lshlrev_b32 v{V_T}, 4, v{V_LANE}')
        for i in range(2):
            for w in range(4):
                a.e(f'ds_read_b128 {vr(V_FIN + 16*i + 4*w)}, v{V_T} offset:{L_Y + w*2048 + i*1024}')
        a.e(f'v_mov_b32 v{V_T1}, 0')
        a.e(f'ds_read_b128 {vr(V_QF)}, v{V_T1} offset:{L_LSUM}')
        a.e(f's_lshl_b32 s{S_T}, s{S_ROW}, 11')
        a.e(f'v_add_u32 v{V_T}, s{S_T}, v{V_T}')
        a.e(f's_lshl_b32 s{S_T}, s{S_ROW}, 3')
        a.e(f's_add_u32 s{S_T}, s{S_T}, {WS_ML}')
        a.e('s_waitcnt lgkmcnt(0)')
        for i in range(2):
            b = V_FIN + 16 * i
            for r in range(4):
                a.e(f'v_add_f32 v{b+r}, v{b+r}, v{b+4+r}')
                a.e(f'v_add_f32 v{b+8+r}, v{b+8+r}, v{b+12+r}')
            for r in range(4):
                a.e(f'v_add_f32 v{b+r}, v{b+r}, v{b+8+r}')
            a.e(f'buffer_store_dwordx4 {vr(b)}, v{V_T}, {sr(R_WS)}, 0 offen offset:{1024*i} sc1')
        a.e(f'v_add_f32 v{V_QF}, v{V_QF}, v{V_QF+1}')
        a.e(f'v_add_f32 v{V_QF+2}, v{V_QF+2}, v{V_QF+3}')
        a.e(f'v_add_f32 v{V_QF+1}, v{V_QF}, v{V_QF+2}')
        a.e(f'v_mov_b32 v{V_QF}, v{V_MAX}')
        a.e(f'v_mov_b32 v{V_T1}, s{S_T}')
        a.e('s_mov_b64 exec, 1')
        a.e(f'buffer_store_dwordx2 {vr(V_QF, 2)}, v{V_T1}, {sr(R_WS)}, 0 offen sc1')
        a.e('s_waitcnt vmcnt(0)')
        a.e(f's_lshl_b32 s{S_T}, s{S_B}, 2')
        a.e(f'v_mov_b32 v{V_T1}, s{S_T}')
        a.e(f'v_mov_b32 v{V_T2}, 1')
        a.e(f'global_atomic_add v{V_T2}, v{V_T1}, v{V_T2}, s[{S_DBG}:{S_DBG+1}] sc0')
        a.e(f'v_mov_b32 v{V_T1}, 0')
        a.e('s_waitcnt vmcnt(0)')
        a.e(f'ds_write_b32 v{V_T1}, v{V_T2} offset:{L_FLAG}')
        a.e('s_mov_b64 exec, -1')
        a.label('L_pubdone')
        a.e('s_waitcnt lgkmcnt(0)\ns_barrier')
        a.e(f'v_mov_b32 v{V_T1}, 0')
        a.e(f'ds_read_b32 v{V_T2}, v{V_T1} offset:{L_FLAG}')
        a.e('s_waitcnt lgkmcnt(0)')
        a.e(f'v_readfirstlane_b32 s{S_T}, v{V_T2}')
        self.stamp()
        a.e('s_nop 3')
        a.e(f's_cmp_lg_u32 s{S_T}, 63')
        a.e('s_cbranch_scc1 L_fin_skip')
        a.e(f's_lshl_b32 s{S_T}, s{S_B}, 6')
        a.e(f's_lshl_b32 s{S_CNT}, s{S_W}, 4')
        a.e(f's_add_u32 s{S_CNT}, s{S_CNT}, s{S_T}')
        a.e(f'v_and_b32 v{V_T1}, 15, v{V_LANE}')
        a.e(f'v_add_u32 v{V_T1}, s{S_CNT}, v{V_T1}')
        a.e(f'v_lshlrev_b32 v{V_T1}, 3, v{V_T1}')
        a.e(f'v_add_u32 v{V_T1}, {WS_ML}, v{V_T1}')
        a.vm = []
        a.vmop('ml', f'buffer_load_dwordx2 {vr(V_QF, 2)}, v{V_T1}, {sr(R_WS)}, 0 offen sc1')
        a.e(f's_lshl_b32 s{S_CNT}, s{S_CNT}, 11')
        a.e(f'v_lshlrev_b32 v{V_T}, 4, v{V_LANE}')
        a.e(f'v_add_u32 v{V_T}, s{S_CNT}, v{V_T}')
        for j in range(16):
            a.e(f's_mov_b32 s{S_T}, {j*2048}')
            for i in range(2):
                a.vmop(('y', j, i), f'buffer_load_dwordx4 {vr(V_FIN + 8*j + 4*i)}, v{V_T}, {sr(R_WS)}, s{S_T} offen offset:{1024*i} sc1')
        a.vmwait('ml')
        m, l, M, e = V_QF, V_QF + 1, V_QF + 2, V_QF + 3
        a.e(f'v_max_f32_dpp v{M}, v{m}, v{m} quad_perm:[1,0,3,2] row_mask:0xf bank_mask:0xf')
        a.e('s_nop 1')
        a.e(f'v_max_f32_dpp v{M}, v{M}, v{M} quad_perm:[2,3,0,1] row_mask:0xf bank_mask:0xf')
        a.e(f'v_sub_f32 v{e}, v{m}, v{M}')
        a.e(f'v_mul_f32 v{e}, s{S_C}, v{e}')
        a.e(f'v_exp_f32 v{e}, v{e}')
        a.e('s_nop 0')
        a.e(f'v_mul_f32 v{l}, v{l}, v{e}')
        a.e('s_nop 1')
        a.e(f'v_add_f32_dpp v{l}, v{l}, v{l} quad_perm:[1,0,3,2] row_mask:0xf bank_mask:0xf')
        a.e('s_nop 1')
        a.e(f'v_add_f32_dpp v{l}, v{l}, v{l} quad_perm:[2,3,0,1] row_mask:0xf bank_mask:0xf')
        a.e(f'v_rcp_f32 v{l}, v{l}')
        a.e('s_nop 0')
        a.e(f'v_mul_f32 v{e}, v{e}, v{l}')
        a.e('s_nop 0')
        for j in range(16):
            a.e(f'v_readlane_b32 s{S_WG+j}, v{e}, {j}')
        for r in range(8):
            a.e(f'v_mov_b32 v{V_D0+r}, 0')
        for j in range(16):
            a.vmwait(('y', j, 1))
            for i in range(2):
                for r in range(4):
                    a.e(f'v_fmac_f32 v{V_D0+4*i+r}, s{S_WG+j}, v{V_FIN+8*j+4*i+r}')
        a.e(f's_lshl_b32 s{S_T}, s{S_W}, 11')
        a.e(f'v_lshlrev_b32 v{V_T}, 4, v{V_LANE}')
        a.e(f'v_add_u32 v{V_T}, s{S_T}, v{V_T}')
        a.e(f'ds_write_b128 v{V_T}, {vr(V_D0)} offset:{L_Y}')
        a.e(f'ds_write_b128 v{V_T}, {vr(V_D1)} offset:{L_Y + 1024}')
        a.e('s_waitcnt lgkmcnt(0)\ns_barrier')
        a.e(f'v_lshlrev_b32 v{V_T}, 3, v{V_TID}')
        for w in range(4):
            a.e(f'ds_read_b64 {vr(V_QF+2*w, 2)}, v{V_T} offset:{L_Y + w*2048}')
        a.e(f's_mul_i32 s{S_T}, s{S_B}, 896')
        a.e(f'v_lshlrev_b32 v{V_T1}, 2, v{V_TID}')
        a.e(f'v_add_u32 v{V_T1}, s{S_T}, v{V_T1}')
        a.e(f'v_cmp_gt_u32 vcc, 224, v{V_TID}')
        a.e('s_waitcnt lgkmcnt(0)')
        for r in range(2):
            a.e(f'v_add_f32 v{V_QF+r}, v{V_QF+r}, v{V_QF+2+r}')
            a.e(f'v_add_f32 v{V_QF+4+r}, v{V_QF+4+r}, v{V_QF+6+r}')
            a.e(f'v_add_f32 v{V_QF+r}, v{V_QF+r}, v{V_QF+4+r}')
        a.e(f'v_cvt_pk_bf16_f32 v{V_QF}, v{V_QF}, v{V_QF+1}')
        a.e(f's_and_saveexec_b64 s[{S_EX}:{S_EX+1}], vcc')
        a.e('s_cbranch_execz L_fin_restore')
        a.e(f'buffer_store_dword v{V_QF}, v{V_T1}, {sr(R_OUT)}, 0 offen')
        a.label('L_fin_restore')
        a.e(f's_mov_b64 exec, s[{S_EX}:{S_EX+1}]')
        a.label('L_fin_skip')
        if self.stamps:
            self.stamp()
            a.e('s_waitcnt vmcnt(0) lgkmcnt(0)')
            a.e(f's_lshl_b32 s{S_T}, s2, 2')
            a.e(f's_add_u32 s{S_T}, s{S_T}, s{S_W}')
            a.e(f's_lshl_b32 s{S_T}, s{S_T}, 7')
            a.e(f's_add_u32 s{S_T}, s{S_T}, {WS_TS}')
            a.e(f'v_mov_b32 v{V_T1}, s{S_T}')
            a.e('s_mov_b64 exec, 1')
            for i in range(0, self.nstamp, 2):
                for k in range(4):
                    src = S_TS + 2*i + k
                    if i*2 + k < 2*self.nstamp:
                        a.e(f'v_mov_b32 v{V_QF+k}, s{src}')
                    else:
                        a.e(f'v_mov_b32 v{V_QF+k}, 0')
                a.e(f'buffer_store_dwordx4 {vr(V_QF)}, v{V_T1}, {sr(R_WS)}, 0 offen offset:{16*i//2*2//2*1 if False else 8*i}')
                a.e('s_nop 1')
            a.e('s_mov_b64 exec, -1')
            a.e(f's_lshl_b32 s{S_T}, s2, 2')
            a.e(f's_add_u32 s{S_T}, s{S_T}, s{S_W}')
            a.e(f's_lshl_b32 s{S_T}, s{S_T}, 8')
            a.e(f's_add_u32 s{S_T}, s{S_T}, {WS_TS + (1<<18)}')
            a.e(f'v_lshlrev_b32 v{V_T2}, 2, v{V_LANE}')
            a.e(f'v_add_u32 v{V_T2}, s{S_T}, v{V_T2}')
            a.e(f'buffer_store_dword v250, v{V_T2}, {sr(R_WS)}, 0 offen')
            a.e('s_mov_b64 exec, 1')
            a.e('s_getreg_b32 s98, hwreg(HW_REG_XCC_ID)')
            a.e('s_getreg_b32 s99, hwreg(HW_REG_HW_ID)')
            a.e(f'v_mov_b32 v{V_QF}, s98')
            a.e(f'v_mov_b32 v{V_QF+1}, s99')
            a.e(f'buffer_store_dwordx2 {vr(V_QF,2)}, v{V_T1}, {sr(R_WS)}, 0 offen offset:64')
            a.e('s_waitcnt vmcnt(0)')
        a.label('L_end')
        a.e('s_endpgm')

    def build(self):
        self.prologue()
        self.k_phase()
        self.midpoint()
        self.v_phase()
        self.tail()
        head = f'''; Kernarg layout (64 bytes, pointers only, base s[0:1]):
; @launch grid=(256,1,1) block=(256,1,1) lds={LDS_BYTES}
.amdgcn_target "amdgcn-amd-amdhsa--gfx950"
.text
.globl {KNAME}
.p2align 8
.type {KNAME},@function
{KNAME}:
'''
        tailtxt = f'''.section .rodata,"a"
.p2align 6
.amdhsa_kernel {KNAME}
  .amdhsa_next_free_vgpr 512
  .amdhsa_next_free_sgpr 102
  .amdhsa_accum_offset 256
  .amdhsa_group_segment_fixed_size 0
  .amdhsa_kernarg_size 64
  .amdhsa_user_sgpr_count 2
  .amdhsa_user_sgpr_kernarg_segment_ptr 1
  .amdhsa_system_sgpr_workgroup_id_x 1
.end_amdhsa_kernel
'''
        return head + self.a.text() + tailtxt

if __name__ == '__main__':
    ap = argparse.ArgumentParser()
    ap.add_argument('-o', default='/dev/stdout')
    ap.add_argument('--PD', type=float, default=5)
    ap.add_argument('--PDK', type=float, default=None)
    ap.add_argument('--PDK2', type=float, default=None)
    ap.add_argument('--PDV', type=float, default=None)
    ap.add_argument('--PDE', default='')
    ap.add_argument('--G', type=int, default=4)
    ap.add_argument('--LAG', type=int, default=14)
    ap.add_argument('--ninit', type=int, default=3)
    ap.add_argument('--stamps', action='store_true')
    ap.add_argument('--wflags', default='')
    ap.add_argument('--kvflags', default='nt')
    ap.add_argument('--dbg', default='')
    ap.add_argument('--ainit', type=int, default=0)
    ap.add_argument('--wpg', type=int, default=4)
    ap.add_argument('--kfirst', type=int, default=8)
    ap.add_argument('--kper', type=float, default=1.0)
    ap.add_argument('--wqflags', default=None)
    ap.add_argument('--kflags', default=None)
    ap.add_argument('--vflags', default=None)
    ap.add_argument('--map', type=int, default=0)
    x = ap.parse_args()
    k = Kernel(PD=x.PD, G=x.G, LAG=x.LAG, stamps=x.stamps, wflags=x.wflags, kvflags=x.kvflags, ninit=x.ninit, dbg=x.dbg, ainit=x.ainit, wpg=x.wpg, kfirst=x.kfirst, kper=x.kper, wqflags=x.wqflags, kflags=x.kflags, vflags=x.vflags, map=x.map, PDK=x.PDK, PDK2=x.PDK2, PDV=x.PDV, PDE=x.PDE)
    open(x.o, 'w').write(k.build())
```

```python
import sys, argparse

KNAME = 'standalone__mha_block_cached__decode_kernel'

class Asm:
    def __init__(self):
        self.L = []
        self.vm = []
    def e(self, s):
        for ln in s.split('\n'):
            self.L.append('    ' + ln.strip())
    def label(self, s):
        self.L.append(s + ':')
    def c(self, s):
        self.L.append('    ; ' + s)
    def vmop(self, tag, s):
        if len(self.vm) >= 63:
            self.e('s_waitcnt vmcnt(62)')
            self.vm = self.vm[-62:]
        self.e(s)
        self.vm.append(tag)
    def vmwait(self, tag):
        if tag not in self.vm:
            return False
        i = self.vm.index(tag)
        n = len(self.vm) - 1 - i
        self.e(f's_waitcnt vmcnt({n})')
        self.vm = self.vm[i + 1:]
        return True
    def vmdrain(self):
        self.e('s_waitcnt vmcnt(0)')
        self.vm = []
    def text(self):
        return '\n'.join(self.L) + '\n'

S_W = 3
S_X, S_K, S_V, S_WQ, S_WO, S_OUT, S_DBG, S_WS = 4, 6, 8, 10, 12, 14, 16, 18
R_K, R_V, R_WQ, R_WO, R_X, R_WS, R_OUT = 20, 24, 28, 32, 36, 40, 44
S_H, S_B, S_SP, S_ROW = 48, 49, 50, 51
S_BASE, S_T, S_CNT, S_C = 52, 53, 54, 55
S_MT = 56
S_EX = 64
S_WG = 66
S_TS = 82
V_TID, V_LANE, V_OK, V_OV, V_OWQ, V_OWO = 0, 1, 2, 3, 4, 5
V_T0, V_LDS, V_MAX, V_L, V_SC, V_E, V_PB, V_T, V_T1, V_T2 = 6, 7, 8, 9, 10, 11, 12, 13, 14, 15
V_D0, V_D1 = 16, 20
V_MASK = 24
V_SEL = 28
V_BX = 36
V_XD = 44
V_BQ = 60
V_RING = 92
V_INIT = 124
V_QF = 220
V_Y = 124
V_FIN = 92
L_PART, L_BF, L_MAX, L_LSUM, L_FLAG, L_Y, L_SC = 0x0000, 0x1000, 0x1200, 0x1210, 0x1220, 0x1400, 0x4000
LDS_BYTES = 0xC000
WS_ML = 0x80000
WS_TS = 3 << 20

def vr(b, n=4):
    return f'v[{b}:{b+n-1}]'
def ar(b, n=4):
    return f'a[{b}:{b+n-1}]'
def sr(b, n=4):
    return f's[{b}:{b+n-1}]'

class Kernel:
    def __init__(self, PD=8, G=4, LAG=14, stamps=False, wflags='', kvflags='nt', ninit=3, dbg='', ainit=0, wpg=4, kfirst=8, kper=1.0, wqflags=None, kflags=None, vflags=None, map=0, PDK=None, PDK2=None, PDV=None, PDE='', kat='', kpost=0, klast=0, rot=0):
        self.rot = rot
        self.klast = klast
        self.kpost = kpost
        self.kat = dict((int(t.split(':')[0]), int(t.split(':')[1])) for t in kat.split(',') if t)
        self.PDK = PD if PDK is None else PDK
        self.PDK2 = self.PDK if PDK2 is None else PDK2
        self.PDV = PD if PDV is None else PDV
        self.PDE = [float(t) for t in PDE.split(',') if t]
        self.map = map
        self.kflags = kvflags if kflags is None else kflags
        self.vflags = kvflags if vflags is None else vflags
        self.dbg = dbg
        self.ainit, self.wpg, self.kfirst, self.kper = ainit, wpg, kfirst, kper
        self.wqflags = wflags if wqflags is None else wqflags
        self.PD, self.G, self.LAG, self.stamps = PD, G, LAG, stamps
        self.wflags, self.kvflags, self.ninit = wflags, kvflags, ninit
        self.a = Asm()
        self.nstamp = 0

    def stamp(self, pro=False):
        if self.stamps and (pro == ('pro' in self.dbg) or self.nstamp == 0) and self.nstamp < 8:
            r = S_TS + 2 * self.nstamp
            self.a.e(f's_memrealtime s[{r}:{r+1}]')
            self.nstamp += 1

    def tl(self):
        if self.stamps:
            a = self.a
            a.e('s_memrealtime s[98:99]')
            a.e('s_waitcnt lgkmcnt(0)')
            a.e('v_writelane_b32 v250, s98, m0')
            a.e('s_add_u32 m0, m0, 1')

    def target(self, s, PD):
        base = int(PD)
        frac = PD - base
        extra = 1 if s < round(frac * 8) else 0
        return min(s + base + extra, s + 8)

    def ring_issue(self, s, PD, cur, nxt):
        T = self.target(s, PD)
        while self.issued < T:
            n = self.issued + 1
            if n < 8:
                kind, base0 = cur
                self.kvload(kind, n, vr(V_RING + 4*n), 0, tag=('ring', n))
            elif nxt is None:
                break
            elif nxt == 'V0':
                self.kvload('V', n - 8, vr(V_RING + 4*(n-8)), 0, base=None, tag=('ring', n - 8))
            else:
                self.kvload(nxt, n - 8, vr(V_RING + 4*(n-8)), 32768, tag=('ring', n - 8))
            self.issued = n

    def blockoff(self, t):
        if self.G == 2: return t * 8192
        if self.G == 4: return (t >> 1) * 16384 + (t & 1) * 2048
        if self.G == 8: return t * 2048
    def waveshift(self):
        return {2: 11, 4: 12, 8: 13}[self.G]

    def kvload(self, kind, slot, dst, extra, base=S_BASE, tag=None):
        a = self.a
        t, j = slot >> 1, slot & 1
        off = extra + self.blockoff(t) + 256 * j
        hi, imm = off & ~0xFFF, off & 0xFFF
        srd, vo = (R_K, V_OK) if kind == 'K' else (R_V, V_OV)
        if base is None:
            if hi:
                a.e(f's_mov_b32 s{S_T}, {hi}')
                so = f's{S_T}'
            else:
                so = '0'
        elif hi:
            a.e(f's_add_u32 s{S_T}, s{base}, {hi}')
            so = f's{S_T}'
        else:
            so = f's{base}'
        fl = self.kflags if kind == 'K' else self.vflags
        a.vmop(tag, f'buffer_load_dwordx4 {dst}, v{vo}, {sr(srd)}, {so} offen offset:{imm} {fl}')

    def prologue(self):
        a = self.a
        a.e(f's_cmp_ge_u32 s2, 256')
        a.e('s_cbranch_scc1 L_end')
        a.e(f's_load_dwordx16 s[4:19], s[0:1], 0')
        self.stamp()
        a.e(f'v_lshrrev_b32 v{V_T0}, 6, v{V_TID}')
        a.e(f'v_and_b32 v{V_LANE}, 63, v{V_TID}')
        a.e(f'v_readfirstlane_b32 s{S_W}, v{V_T0}')
        a.c('workgroup id -> head (two heads per XCD under round-robin placement), batch, split')
        if self.map in (0, 2):
            a.e(f's_and_b32 s{S_H}, s2, 7')
            a.e(f's_lshl_b32 s{S_H}, s{S_H}, 1')
            a.e(f's_bfe_u32 s{S_T}, s2, 0x10003')
            if self.map == 2:
                a.e(f's_xor_b32 s{S_T}, s{S_T}, 1')
            a.e(f's_add_u32 s{S_H}, s{S_H}, s{S_T}')
            a.e(f's_bfe_u32 s{S_SP}, s2, 0x20004')
            a.e(f's_lshr_b32 s{S_B}, s2, 6')
        else:
            a.e(f's_lshr_b32 s{S_H}, s2, 4')
            a.e(f's_and_b32 s{S_SP}, s2, 3')
            a.e(f's_bfe_u32 s{S_B}, s2, 0x20002')
        a.e(f's_lshl_b32 s{S_ROW}, s{S_B}, 6')
        a.e(f's_lshl_b32 s{S_T}, s{S_H}, 2')
        a.e(f's_add_u32 s{S_ROW}, s{S_ROW}, s{S_T}')
        a.e(f's_add_u32 s{S_ROW}, s{S_ROW}, s{S_SP}')
        a.e(f's_mov_b32 s{S_C}, 0x3db8aa3b')
        if self.stamps:
            a.e('s_mov_b32 m0, 0')
        g, m, c, kk = V_T, V_T1, V_T2, V_E
        a.e(f'v_lshrrev_b32 v{g}, 4, v{V_LANE}')
        a.e(f'v_and_b32 v{m}, 15, v{V_LANE}')
        a.e(f'v_and_b32 v{c}, 3, v{V_LANE}')
        a.e(f'v_bfe_u32 v{kk}, v{V_LANE}, 2, 2')
        a.e(f'v_lshlrev_b32 v{V_OK}, 9, v{kk}')
        a.e(f'v_lshl_add_u32 v{V_OK}, v{g}, 6, v{V_OK}')
        a.e(f'v_lshl_add_u32 v{V_OK}, v{c}, 4, v{V_OK}')
        a.e(f'v_lshlrev_b32 v{V_OV}, 9, v{g}')
        a.e(f'v_lshl_add_u32 v{V_OV}, v{m}, 4, v{V_OV}')
        a.e(f's_lshl_b32 s{S_T}, s{S_W}, {self.waveshift()}')
        a.e(f'v_add_u32 v{V_OK}, s{S_T}, v{V_OK}')
        a.e(f'v_add_u32 v{V_OV}, s{S_T}, v{V_OV}')
        a.e(f's_mul_i32 s{S_T}, s{S_W}, {112*8192}')
        a.e(f'v_mul_u32_u24 v{V_OWQ}, {28*8192}, v{g}')
        a.e(f'v_lshl_add_u32 v{V_OWQ}, v{m}, 4, v{V_OWQ}')
        a.e(f'v_add_u32 v{V_OWQ}, s{S_T}, v{V_OWQ}')
        a.e(f's_mul_i32 s{S_T}, s{S_W}, {64*896}')
        a.e(f'v_mul_u32_u24 v{V_OWO}, {16*896}, v{g}')
        a.e(f'v_lshl_add_u32 v{V_OWO}, v{m}, 4, v{V_OWO}')
        a.e(f'v_add_u32 v{V_OWO}, s{S_T}, v{V_OWO}')
        a.e(f's_mul_i32 s{S_T}, s{S_W}, 224')
        a.e(f's_mul_i32 s{S_CNT}, s{S_B}, 896')
        a.e(f's_add_u32 s{S_T}, s{S_T}, s{S_CNT}')
        a.e(f'v_mul_u32_u24 v{V_T0}, 56, v{g}')
        a.e(f'v_add_u32 v{V_T0}, s{S_T}, v{V_T0}')
        if self.rot:
            a.e(f's_lshl_b32 s{S_T}, s{S_B}, 2')
            a.e(f's_add_u32 s{S_T}, s{S_T}, s{S_SP}')
            a.e(f's_mul_i32 s{S_T}, s{S_T}, 7')
            a.e(f's_lshr_b32 s{S_T}, s{S_T}, 3')
            a.e(f's_lshl_b32 s{S_WG}, s{S_T}, 2')
            for i in range(1, 14):
                a.e(f's_add_u32 s{S_WG+i}, s{S_WG+i-1}, 4')
                a.e(f's_cmp_eq_u32 s{S_WG+i}, 56')
                a.e(f's_cselect_b32 s{S_WG+i}, 0, s{S_WG+i}')
        a.e('s_waitcnt lgkmcnt(0)')
        a.e(f's_lshl_b32 s{S_T}, s{S_B}, 4')
        a.e(f's_add_u32 s{S_T}, s{S_T}, s{S_H}')
        a.e(f's_lshl_b32 s{S_T}, s{S_T}, 2')
        a.e(f's_add_u32 s{S_T}, s{S_T}, s{S_SP}')
        a.e(f's_lshl_b32 s{S_CNT}, s{S_T}, 20')
        for (p, r) in ((S_K, R_K), (S_V, R_V)):
            a.e(f's_add_u32 s{r}, s{p}, s{S_CNT}')
            a.e(f's_addc_u32 s{r+1}, s{p+1}, 0')
            a.e(f's_mov_b32 s{r+2}, 0x100000')
            a.e(f's_mov_b32 s{r+3}, 0x20000')
        a.e(f's_mov_b32 s{R_X}, s{S_X}')
        a.e(f's_mov_b32 s{R_X+1}, s{S_X+1}')
        a.e(f's_mov_b32 s{R_X+2}, 3584')
        a.e(f's_mov_b32 s{R_X+3}, 0x20000')
        a.e(f's_lshl_b32 s{S_T}, s{S_H}, 9')
        a.e(f's_add_u32 s{R_WQ}, s{S_WQ}, s{S_T}')
        a.e(f's_addc_u32 s{R_WQ+1}, s{S_WQ+1}, 0')
        a.e(f's_sub_u32 s{R_WQ+2}, {448*8192}, s{S_T}')
        a.e(f's_mov_b32 s{R_WQ+3}, 0x20000')
        a.e(f's_mul_i32 s{S_T}, s{S_H}, {256*896}')
        a.e(f's_add_u32 s{R_WO}, s{S_WO}, s{S_T}')
        a.e(f's_addc_u32 s{R_WO+1}, s{S_WO+1}, 0')
        a.e(f's_mov_b32 s{R_WO+2}, {256*896}')
        a.e(f's_mov_b32 s{R_WO+3}, 0x20000')
        def x_issue(i):
            a.vmop(('x', i), f'buffer_load_dword v{V_XD+i}, v{V_T0}, {sr(R_X)}, s{S_WG+i} offen')
        if self.rot:
            x_issue(0)
        else:
            for i, (n, nm) in enumerate(((4, 'x4'), (4, 'x4'), (4, 'x4'), (2, 'x2'))):
                a.vmop(('x', i), f'buffer_load_dword{nm} {vr(V_XD+4*i, n)}, v{V_T0}, {sr(R_X)}, 0 offen offset:{16*i}')
        a.e(f's_mov_b32 s{R_WS}, s{S_WS}')
        a.e(f's_mov_b32 s{R_WS+1}, s{S_WS+1}')
        a.e(f's_mov_b32 s{R_WS+2}, 0x400000')
        a.e(f's_mov_b32 s{R_WS+3}, 0x20000')
        a.e(f's_mov_b32 s{R_OUT}, s{S_OUT}')
        a.e(f's_mov_b32 s{R_OUT+1}, s{S_OUT+1}')
        a.e(f's_mov_b32 s{R_OUT+2}, 3584')
        a.e(f's_mov_b32 s{R_OUT+3}, 0x20000')

        ninit = self.ninit
        ntot = ninit + self.ainit
        def initreg(gi, s):
            if gi < ninit: return vr(V_INIT + 32 * gi + 4 * s)
            return ar(224 + 4 * s)
        self.initreg = initreg
        kq = [('ring', s) for s in range(8)] + [(('init', gi), s) for gi in range(ntot) for s in range(8)]
        def k_issue(n):
            for _ in range(n):
                if not kq or 'nok' in self.dbg: return
                grp, s = kq.pop(0)
                if grp == 'ring':
                    self.kvload('K', s, vr(V_RING + 4 * s), ntot * 32768, base=None, tag=('ring', s))
                else:
                    gi = grp[1]
                    self.kvload('K', s, initreg(gi, s), gi * 32768, base=None, tag=('init', gi, s))
        def wq_issue(u):
            if self.rot:
                if u % 2 == 0 and u // 2 + 1 < 14:
                    x_issue(u // 2 + 1)
                a.e(f's_lshl_b32 s{S_T}, s{S_WG + u // 2}, 12')
                if u & 1:
                    a.e(f's_add_u32 s{S_T}, s{S_T}, 8192')
            else:
                a.e(f's_mov_b32 s{S_T}, {u*8192}')
            for j in range(2):
                a.vmop(('wq', u, j), f'buffer_load_dwordx4 {ar(8*u+4*j)}, v{V_OWQ}, {sr(R_WQ)}, s{S_T} offen offset:{256*j} {self.wqflags}')
        def consume(u):
            if self.rot:
                a.vmwait(('x', u // 2))
            elif u == 0:
                a.vmwait(('x', 3))
            st = V_BX + 4 * (u & 1)
            xd = V_XD + (u >> 1)
            for jj in range(4):
                a.e(f'v_perm_b32 v{st+jj}, v{xd}, v{xd}, v{V_SEL + 2*jj + (u & 1)}')
            a.vmwait(('wq', u, 1))
            if u in (0, 7, 14, 21, 27): self.stamp(True)
            a.e('s_nop 1')
            for j in range(2):
                d = V_D0 if j == 0 else V_D1
                cacc = '0' if u == 0 else vr(d)
                a.e(f'v_mfma_f32_16x16x32_bf16 {vr(d)}, {ar(8*u+4*j)}, {vr(st)}, {cacc}')
        k_issue(self.kfirst)
        acc = 0.0
        done = 0
        for u in range(28):
            wq_issue(u)
            acc += self.kper
            while acc >= 1.0:
                k_issue(1); acc -= 1.0
            k_issue(self.kat.get(u, 0))
            if u == 1:
                self.lane_consts()
            if u >= self.LAG:
                consume(done); done += 1
        if not self.kpost and not self.klast:
            k_issue(64)
        while done < 28:
            consume(done); done += 1
            k_issue(self.kpost)
        if not self.klast:
            k_issue(64)
        self.stamp()
        self.stamp(True)
        n8 = V_T1
        a.e(f'v_lshrrev_b32 v{V_T}, 4, v{V_LANE}')
        a.e(f'v_lshlrev_b32 v{V_T}, 7, v{V_T}')
        a.e(f'v_lshl_add_u32 v{V_T}, v{V_T1}, 2, v{V_T}')
        a.e(f's_lshl_b32 s{S_T}, s{S_W}, 10')
        a.e(f'v_add_u32 v{V_QF}, s{S_T}, v{V_T}')
        a.e(f's_mov_b32 exec_lo, 0x00ff00ff\ns_mov_b32 exec_hi, 0x00ff00ff')
        a.e('s_nop 7')
        for j in range(2):
            for r in range(4):
                d = (V_D0 if j == 0 else V_D1) + r
                a.e(f'ds_write_b32 v{V_QF}, v{d} offset:{L_PART + j*512 + r*32}')
        a.e('s_mov_b64 exec, -1')
        if self.klast == 1:
            k_issue(64)
        a.e('s_waitcnt lgkmcnt(0)\ns_barrier')
        a.e(f'v_lshlrev_b32 v{V_T}, 2, v{V_TID}')
        for w in range(4):
            a.e(f'ds_read_b32 v{V_QF+w}, v{V_T} offset:{L_PART + w*1024}')
        a.e(f'v_lshlrev_b32 v{V_T2}, 1, v{V_TID}')
        a.e('s_waitcnt lgkmcnt(0)')
        a.e(f'v_add_f32 v{V_QF}, v{V_QF}, v{V_QF+1}')
        a.e(f'v_add_f32 v{V_QF+2}, v{V_QF+2}, v{V_QF+3}')
        a.e(f'v_add_f32 v{V_QF}, v{V_QF}, v{V_QF+2}')
        a.e(f'v_cvt_pk_bf16_f32 v{V_QF}, v{V_QF}, v{V_QF}')
        a.e(f'ds_write_b16 v{V_T2}, v{V_QF} offset:{L_BF}')
        a.e(f'v_lshrrev_b32 v{V_T}, 4, v{V_LANE}')
        a.e(f'v_lshlrev_b32 v{V_T}, 6, v{V_T}')
        a.e(f'v_and_b32 v{V_T2}, 3, v{V_LANE}')
        a.e(f'v_lshl_add_u32 v{V_T}, v{V_T2}, 4, v{V_T}')
        a.e('s_waitcnt lgkmcnt(0)\ns_barrier')
        for j in range(2):
            a.e(f'ds_read_b128 {vr(V_QF+4*j)}, v{V_T} offset:{L_BF + 256*j}')
        for t in range(4):
            mk = 0x000F000F << (4 * t)
            a.e(f's_mov_b32 s{S_MT+2*t}, {mk:#x}\ns_mov_b32 s{S_MT+2*t+1}, {mk:#x}')
        a.e(f's_lshl_b32 s{S_T}, s{S_W}, 13')
        a.e(f's_add_u32 s{S_T}, s{S_T}, {L_SC}')
        a.e(f'v_lshlrev_b32 v{V_LDS}, 2, v{V_LANE}')
        a.e(f'v_add_u32 v{V_LDS}, s{S_T}, v{V_LDS}')
        a.e(f'v_mov_b32 v{V_MAX}, 0xff800000')
        a.e('s_waitcnt lgkmcnt(0)')
        for t in range(4):
            for j in range(2):
                for r in range(4):
                    a.e(f'v_cndmask_b32 v{V_BQ + 4*(2*t+j) + r}, 0, v{V_QF+4*j+r}, s[{S_MT+2*t}:{S_MT+2*t+1}]')
        a.e('s_nop 1')
        k_issue(64)
        self.stamp()
        self.stamp(True)

    def lane_consts(self):
        a = self.a
        n = V_T1
        a.e(f'v_and_b32 v{V_T2}, 1, v{n}')
        a.e(f'v_cmp_eq_u32 vcc, 1, v{V_T2}')
        a.e(f'v_mov_b32 v{V_E}, 0x0c0c0100\nv_mov_b32 v{V_PB}, 0x01000c0c')
        a.e(f'v_cndmask_b32 v{V_E}, v{V_E}, v{V_PB}, vcc')
        a.e(f'v_mov_b32 v{V_PB}, 0x0c0c0302\nv_mov_b32 v{V_SC}, 0x03020c0c')
        a.e(f'v_cndmask_b32 v{V_PB}, v{V_PB}, v{V_SC}, vcc')
        a.e(f'v_mov_b32 v{V_SC}, 0x0000ffff\nv_mov_b32 v{V_L}, 0xffff0000')
        a.e(f'v_cndmask_b32 v{V_SC}, v{V_SC}, v{V_L}, vcc')
        a.e(f'v_lshrrev_b32 v{V_T2}, 1, v{n}')
        a.e(f'v_mov_b32 v{V_L}, 0x0c0c0c0c')
        for jj in range(4):
            a.e(f'v_cmp_eq_u32 vcc, {jj}, v{V_T2}')
            a.e('s_nop 1')
            a.e(f'v_cndmask_b32 v{V_SEL+2*jj}, v{V_L}, v{V_E}, vcc')
            a.e(f'v_cndmask_b32 v{V_SEL+2*jj+1}, v{V_L}, v{V_PB}, vcc')
            a.e(f'v_cndmask_b32 v{V_MASK+jj}, 0, v{V_SC}, vcc')
        a.e(f'v_mov_b32 v{V_L}, 0')

    def score_finish(self, off):
        a = self.a
        a.e('s_nop 7')
        dpp = 'row_mask:0xf bank_mask:0xf'
        a.e(f'v_mov_b32_dpp v{V_T}, v{V_D0} quad_perm:[0,0,0,0] {dpp}')
        a.e(f'v_mov_b32_dpp v{V_T1}, v{V_D0+2} quad_perm:[2,2,2,2] {dpp}')
        a.e('s_nop 0')
        a.e(f'v_add_f32_dpp v{V_T}, v{V_D0+1}, v{V_T} quad_perm:[1,1,1,1] {dpp}')
        a.e(f'v_add_f32_dpp v{V_T1}, v{V_D0+3}, v{V_T1} quad_perm:[3,3,3,3] {dpp}')
        a.e(f'v_add_f32 v{V_T}, v{V_T}, v{V_T1}')
        a.e(f'ds_write_b32 v{V_LDS}, v{V_T} offset:{off}')
        a.e(f'v_max_f32 v{V_MAX}, v{V_MAX}, v{V_T}')

    def wo_issue(self):
        if not self.woq or 'nowo' in self.dbg: return
        z = self.woq.pop(0)
        u, cb = z >> 2, z & 3
        a = self.a
        a.e(f's_mov_b32 s{S_T}, {u*896}')
        a.vmop(('wo', z), f'buffer_load_dwordx4 {ar(4*z)}, v{V_OWO}, {sr(R_WO)}, s{S_T} offen offset:{224*cb} {self.wflags}')

    def k_group(self, src, nxt, scoff, first_ring=False, nwo=0, PD=None):
        a = self.a
        PD = self.PDK if PD is None else PD
        wo_at = {0: [], 1: [3], 2: [1, 5], 3: [1, 4, 6], 4: [1, 3, 5, 7], 8: list(range(8))}[nwo]
        for s in range(8):
            a.vmwait(src['tag'](s))
            cacc = '0' if s == 0 else vr(V_D0)
            a.e(f'v_mfma_f32_16x16x32_bf16 {vr(V_D0)}, {src["reg"](s)}, {vr(V_BQ + 4*s)}, {cacc}')
            if nxt is not None:
                self.ring_issue(s, PD, ('K', 0), 'K' if nxt == 'K' else 'V0')
            if s in wo_at:
                self.wo_issue()
        if nxt is not None:
            self.issued -= 8
        self.score_finish(scoff)
        self.tl()

    def k_phase(self):
        a = self.a
        ntot = self.ninit + self.ainit
        self.woq = list(range(64))
        ring = {'reg': lambda s: vr(V_RING + 4*s), 'tag': lambda s: ('ring', s)}
        a.e(f's_mov_b32 s{S_BASE}, {ntot*32768}')
        a.e(f'v_mov_b32 v{V_PB}, v{V_LDS}')
        self.issued = 7
        self.k_group(ring, 'K', ntot * 256, first_ring=True)
        a.e(f's_add_u32 s{S_BASE}, s{S_BASE}, 32768')
        for gi in range(ntot):
            self.k_group({'reg': (lambda s, gi=gi: self.initreg(gi, s)), 'tag': (lambda s, gi=gi: ('init', gi, s))}, None, gi * 256)
        g = ntot + 1
        while self.woq and 'nowo' not in self.dbg:
            assert g <= 30
            self.k_group(ring, 'K', g * 256, nwo=self.wpg)
            a.e(f's_add_u32 s{S_BASE}, s{S_BASE}, 32768')
            g += 1
        first = True
        while first or any(t[0] != 'ring' for t in a.vm):
            first = False
            assert g <= 30
            self.k_group(ring, 'K', g * 256, PD=self.PDK2)
            a.e(f's_add_u32 s{S_BASE}, s{S_BASE}, 32768')
            g += 1
        a.e(f'v_add_u32 v{V_LDS}, {g*256}, v{V_LDS}')
        if g <= 30:
            a.e(f's_mov_b32 s{S_CNT}, {31 - g}')
            entry = (list(a.vm), self.issued)
            a.label('L_kloop')
            self.k_group(ring, 'K', 0, PD=self.PDK2)
            assert (a.vm, self.issued) == entry, (a.vm, entry)
            a.e(f'v_add_u32 v{V_LDS}, 256, v{V_LDS}')
            a.e(f's_add_u32 s{S_BASE}, s{S_BASE}, 32768')
            a.e(f's_sub_u32 s{S_CNT}, s{S_CNT}, 1')
            a.e(f's_cmp_lg_u32 s{S_CNT}, 0')
            a.e('s_cbranch_scc1 L_kloop')
        self.k_group(ring, 'V', 0, PD=self.PDV)
        a.e(f'v_mov_b32 v{V_LDS}, v{V_PB}')
        self.stamp()

    def midpoint(self):
        a = self.a
        v = V_MAX
        for ctl in ('row_ror:4 row_mask:0xf', 'row_ror:8 row_mask:0xf', 'row_bcast:15 row_mask:0xa', 'row_bcast:31 row_mask:0xc'):
            a.e('s_nop 1')
            a.e(f'v_max_f32_dpp v{v}, v{v}, v{v} {ctl} bank_mask:0xf')
        a.e(f's_lshl_b32 s{S_T}, s{S_W}, 2')
        a.e(f'v_mov_b32 v{V_T}, s{S_T}')
        a.e('s_mov_b32 exec_lo, 0\ns_mov_b32 exec_hi, 0x80000000')
        a.e(f'ds_write_b32 v{V_T}, v{v} offset:{L_MAX}')
        a.e('s_mov_b64 exec, -1')
        a.e(f'v_mov_b32 v{V_T}, 0')
        a.e('s_waitcnt lgkmcnt(0)\ns_barrier')
        a.e(f'ds_read_b128 {vr(V_QF)}, v{V_T} offset:{L_MAX}')
        a.e(f'ds_read_b32 v{V_SC}, v{V_LDS}')
        a.e('s_waitcnt lgkmcnt(0)')
        a.e(f'v_max3_f32 v{V_MAX}, v{V_QF}, v{V_QF+1}, v{V_QF+2}')
        a.e(f'v_max_f32 v{V_MAX}, v{V_MAX}, v{V_QF+3}')
        a.e(f'v_mul_f32 v{V_T2}, s{S_C}, v{V_MAX}')
        a.e(f'v_sub_f32 v{V_T2}, 0, v{V_T2}')

    def v_group(self, last, PD=None):
        a = self.a
        PD = self.PDV if PD is None else PD
        a.e('s_waitcnt lgkmcnt(0)')
        a.e(f'v_fma_f32 v{V_E}, v{V_SC}, s{S_C}, v{V_T2}')
        if not last:
            a.e(f'ds_read_b32 v{V_SC}, v{V_LDS} offset:256')
        a.e(f'v_exp_f32 v{V_E}, v{V_E}')
        a.e('s_nop 0')
        a.e(f'v_cvt_pk_bf16_f32 v{V_PB}, v{V_E}, v{V_E}')
        a.e(f'v_add_f32 v{V_L}, v{V_L}, v{V_E}')
        a.e('s_nop 0')
        def build(t):
            st = V_BX + 4 * (t & 1)
            for jj in range(4):
                a.e(f'v_and_b32_dpp v{st+jj}, v{V_PB}, v{V_MASK+jj} row_newbcast:{4*t} row_mask:0xf bank_mask:0xf')
        build(0)
        a.e('s_nop 0')
        for t in range(4):
            st = V_BX + 4 * (t & 1)
            for j in range(2):
                s = 2 * t + j
                a.vmwait(('ring', s))
                d = V_D0 if j == 0 else V_D1
                a.e(f'v_mfma_f32_16x16x32_bf16 {vr(d)}, {vr(V_RING + 4*s)}, {vr(st)}, {vr(d)}')
                self.ring_issue(s, PD, ('V', 0), None if last else 'V')
                if j == 0 and t < 3:
                    build(t + 1)
        self.issued -= 8
        self.tl()

    def v_step(self):
        a = self.a
        a.e(f'v_add_u32 v{V_LDS}, 256, v{V_LDS}')
        a.e(f's_add_u32 s{S_BASE}, s{S_BASE}, 32768')

    def v_phase(self):
        a = self.a
        nend = len(self.PDE)
        a.e(f's_mov_b32 s{S_BASE}, 0')
        a.e(f's_mov_b32 s{S_CNT}, {31 - nend}')
        for r in range(8):
            a.e(f'v_mov_b32 v{V_D0+r}, 0')
        entry = (list(a.vm), self.issued)
        a.label('L_vloop')
        self.v_group(False)
        assert (a.vm, self.issued) == entry, (a.vm, entry)
        self.v_step()
        a.e(f's_sub_u32 s{S_CNT}, s{S_CNT}, 1')
        a.e(f's_cmp_lg_u32 s{S_CNT}, 0')
        a.e('s_cbranch_scc1 L_vloop')
        for pd in self.PDE:
            self.v_group(False, PD=pd)
            self.v_step()
        self.v_group(True, PD=(self.PDE[-1] if nend else None))
        self.stamp()

    def tail(self):
        a = self.a
        v = V_L
        for ctl in ('row_ror:4 row_mask:0xf', 'row_ror:8 row_mask:0xf', 'row_bcast:15 row_mask:0xa', 'row_bcast:31 row_mask:0xc'):
            a.e('s_nop 1')
            a.e(f'v_add_f32_dpp v{v}, v{v}, v{v} {ctl} bank_mask:0xf')
        a.e(f's_lshl_b32 s{S_T}, s{S_W}, 2')
        a.e(f'v_mov_b32 v{V_T}, s{S_T}')
        a.e('s_mov_b32 exec_lo, 0\ns_mov_b32 exec_hi, 0x80000000')
        a.e(f'ds_write_b32 v{V_T}, v{v} offset:{L_LSUM}')
        a.e('s_mov_b64 exec, -1')
        a.e(f'v_lshrrev_b32 v{V_T}, 4, v{V_LANE}')
        a.e(f'v_lshlrev_b32 v{V_T}, 7, v{V_T}')
        a.e(f'v_and_b32 v{V_T1}, 15, v{V_LANE}')
        a.e(f'v_lshl_add_u32 v{V_T}, v{V_T1}, 2, v{V_T}')
        a.e(f's_lshl_b32 s{S_T}, s{S_W}, 10')
        a.e(f'v_add_u32 v{V_QF}, s{S_T}, v{V_T}')
        a.e(f's_mov_b32 exec_lo, 0x00ff00ff\ns_mov_b32 exec_hi, 0x00ff00ff')
        for j in range(2):
            for r in range(4):
                d = (V_D0 if j == 0 else V_D1) + r
                a.e(f'ds_write_b32 v{V_QF}, v{d} offset:{L_PART + j*512 + r*32}')
        a.e('s_mov_b64 exec, -1')
        a.e('s_waitcnt lgkmcnt(0)\ns_barrier')
        a.e(f'v_lshlrev_b32 v{V_E}, 2, v{V_TID}')
        for w in range(4):
            a.e(f'ds_read_b32 v{V_QF+w}, v{V_E} offset:{L_PART + w*1024}')
        a.e(f'v_lshlrev_b32 v{V_SC}, 1, v{V_TID}')
        a.e(f'v_lshrrev_b32 v{V_PB}, 4, v{V_LANE}')
        a.e(f'v_lshlrev_b32 v{V_PB}, 5, v{V_PB}')
        a.e(f's_lshl_b32 s{S_T}, s{S_W}, 7')
        a.e(f'v_add_u32 v{V_PB}, s{S_T}, v{V_PB}')
        a.e('s_waitcnt lgkmcnt(0)')
        a.e(f'v_add_f32 v{V_QF}, v{V_QF}, v{V_QF+1}')
        a.e(f'v_add_f32 v{V_QF+2}, v{V_QF+2}, v{V_QF+3}')
        a.e(f'v_add_f32 v{V_QF}, v{V_QF}, v{V_QF+2}')
        a.e(f'v_cvt_pk_bf16_f32 v{V_QF}, v{V_QF}, v{V_QF}')
        a.e(f'ds_write_b16 v{V_SC}, v{V_QF} offset:{L_BF}')
        a.e('s_waitcnt lgkmcnt(0)')
        for i in range(2):
            a.e(f'ds_read_b128 {vr(V_XD+4*i)}, v{V_PB} offset:{L_BF + 16*i}')
        a.e('s_waitcnt lgkmcnt(0)')
        def build(u):
            st = V_BX + 4 * (u & 1)
            xd = V_XD + (u >> 1)
            for jj in range(4):
                a.e(f'v_perm_b32 v{st+jj}, v{xd}, v{xd}, v{V_SEL + 2*jj + (u & 1)}')
        build(0)
        a.e('s_nop 1')
        for u in range(16):
            st = V_BX + 4 * (u & 1)
            for cb in range(4):
                y = V_Y + 4 * cb
                cacc = '0' if u == 0 else vr(y)
                a.e(f'v_mfma_f32_16x16x32_bf16 {vr(y)}, {ar(4*(4*u+cb))}, {vr(st)}, {cacc}')
                if cb == 0 and u < 15:
                    build(u + 1)
        a.e(f's_lshl_b32 s{S_T}, s{S_W}, 11')
        a.e(f'v_add_u32 v{V_QF}, s{S_T}, v{V_T}')
        a.e(f's_mov_b32 exec_lo, 0x00ff00ff\ns_mov_b32 exec_hi, 0x00ff00ff')
        a.e('s_nop 7')
        for r in range(4):
            if r == 2:
                a.e('s_mov_b32 exec_hi, 0x000000ff')
            for cb in range(4):
                a.e(f'ds_write_b32 v{V_QF}, v{V_Y+4*cb+r} offset:{L_Y + cb*448 + r*32}')
        a.e('s_mov_b64 exec, -1')
        a.e('s_waitcnt lgkmcnt(0)\ns_barrier')
        self.stamp()
        a.e(f's_cmp_lg_u32 s{S_W}, 0')
        a.e('s_cbranch_scc1 L_pubdone')
        a.e(f'v_lshlrev_b32 v{V_T}, 4, v{V_LANE}')
        for i in range(2):
            for w in range(4):
                a.e(f'ds_read_b128 {vr(V_FIN + 16*i + 4*w)}, v{V_T} offset:{L_Y + w*2048 + i*1024}')
        a.e(f'v_mov_b32 v{V_T1}, 0')
        a.e(f'ds_read_b128 {vr(V_QF)}, v{V_T1} offset:{L_LSUM}')
        a.e(f's_lshl_b32 s{S_T}, s{S_ROW}, 11')
        a.e(f'v_add_u32 v{V_T}, s{S_T}, v{V_T}')
        a.e(f's_lshl_b32 s{S_T}, s{S_ROW}, 3')
        a.e(f's_add_u32 s{S_T}, s{S_T}, {WS_ML}')
        a.e('s_waitcnt lgkmcnt(0)')
        for i in range(2):
            b = V_FIN + 16 * i
            for r in range(4):
                a.e(f'v_add_f32 v{b+r}, v{b+r}, v{b+4+r}')
                a.e(f'v_add_f32 v{b+8+r}, v{b+8+r}, v{b+12+r}')
            for r in range(4):
                a.e(f'v_add_f32 v{b+r}, v{b+r}, v{b+8+r}')
            a.e(f'buffer_store_dwordx4 {vr(b)}, v{V_T}, {sr(R_WS)}, 0 offen offset:{1024*i} sc1')
        a.e(f'v_add_f32 v{V_QF}, v{V_QF}, v{V_QF+1}')
        a.e(f'v_add_f32 v{V_QF+2}, v{V_QF+2}, v{V_QF+3}')
        a.e(f'v_add_f32 v{V_QF+1}, v{V_QF}, v{V_QF+2}')
        a.e(f'v_mov_b32 v{V_QF}, v{V_MAX}')
        a.e(f'v_mov_b32 v{V_T1}, s{S_T}')
        a.e('s_mov_b64 exec, 1')
        a.e(f'buffer_store_dwordx2 {vr(V_QF, 2)}, v{V_T1}, {sr(R_WS)}, 0 offen sc1')
        a.e('s_waitcnt vmcnt(0)')
        a.e(f's_lshl_b32 s{S_T}, s{S_B}, 2')
        a.e(f'v_mov_b32 v{V_T1}, s{S_T}')
        a.e(f'v_mov_b32 v{V_T2}, 1')
        a.e(f'global_atomic_add v{V_T2}, v{V_T1}, v{V_T2}, s[{S_DBG}:{S_DBG+1}] sc0')
        a.e(f'v_mov_b32 v{V_T1}, 0')
        a.e('s_waitcnt vmcnt(0)')
        a.e(f'ds_write_b32 v{V_T1}, v{V_T2} offset:{L_FLAG}')
        a.e('s_mov_b64 exec, -1')
        a.label('L_pubdone')
        a.e('s_waitcnt lgkmcnt(0)\ns_barrier')
        a.e(f'v_mov_b32 v{V_T1}, 0')
        a.e(f'ds_read_b32 v{V_T2}, v{V_T1} offset:{L_FLAG}')
        a.e('s_waitcnt lgkmcnt(0)')
        a.e(f'v_readfirstlane_b32 s{S_T}, v{V_T2}')
        self.stamp()
        a.e('s_nop 3')
        a.e(f's_cmp_lg_u32 s{S_T}, 63')
        a.e('s_cbranch_scc1 L_fin_skip')
        a.e(f's_lshl_b32 s{S_T}, s{S_B}, 6')
        a.e(f's_lshl_b32 s{S_CNT}, s{S_W}, 4')
        a.e(f's_add_u32 s{S_CNT}, s{S_CNT}, s{S_T}')
        a.e(f'v_and_b32 v{V_T1}, 15, v{V_LANE}')
        a.e(f'v_add_u32 v{V_T1}, s{S_CNT}, v{V_T1}')
        a.e(f'v_lshlrev_b32 v{V_T1}, 3, v{V_T1}')
        a.e(f'v_add_u32 v{V_T1}, {WS_ML}, v{V_T1}')
        a.vm = []
        a.vmop('ml', f'buffer_load_dwordx2 {vr(V_QF, 2)}, v{V_T1}, {sr(R_WS)}, 0 offen sc1')
        a.e(f's_lshl_b32 s{S_CNT}, s{S_CNT}, 11')
        a.e(f'v_lshlrev_b32 v{V_T}, 4, v{V_LANE}')
        a.e(f'v_add_u32 v{V_T}, s{S_CNT}, v{V_T}')
        for j in range(16):
            a.e(f's_mov_b32 s{S_T}, {j*2048}')
            for i in range(2):
                a.vmop(('y', j, i), f'buffer_load_dwordx4 {vr(V_FIN + 8*j + 4*i)}, v{V_T}, {sr(R_WS)}, s{S_T} offen offset:{1024*i} sc1')
        a.vmwait('ml')
        m, l, M, e = V_QF, V_QF + 1, V_QF + 2, V_QF + 3
        a.e(f'v_max_f32_dpp v{M}, v{m}, v{m} quad_perm:[1,0,3,2] row_mask:0xf bank_mask:0xf')
        a.e('s_nop 1')
        a.e(f'v_max_f32_dpp v{M}, v{M}, v{M} quad_perm:[2,3,0,1] row_mask:0xf bank_mask:0xf')
        a.e(f'v_sub_f32 v{e}, v{m}, v{M}')
        a.e(f'v_mul_f32 v{e}, s{S_C}, v{e}')
        a.e(f'v_exp_f32 v{e}, v{e}')
        a.e('s_nop 0')
        a.e(f'v_mul_f32 v{l}, v{l}, v{e}')
        a.e('s_nop 1')
        a.e(f'v_add_f32_dpp v{l}, v{l}, v{l} quad_perm:[1,0,3,2] row_mask:0xf bank_mask:0xf')
        a.e('s_nop 1')
        a.e(f'v_add_f32_dpp v{l}, v{l}, v{l} quad_perm:[2,3,0,1] row_mask:0xf bank_mask:0xf')
        a.e(f'v_rcp_f32 v{l}, v{l}')
        a.e('s_nop 0')
        a.e(f'v_mul_f32 v{e}, v{e}, v{l}')
        a.e('s_nop 0')
        for j in range(16):
            a.e(f'v_readlane_b32 s{S_WG+j}, v{e}, {j}')
        for r in range(8):
            a.e(f'v_mov_b32 v{V_D0+r}, 0')
        for j in range(16):
            a.vmwait(('y', j, 1))
            for i in range(2):
                for r in range(4):
                    a.e(f'v_fmac_f32 v{V_D0+4*i+r}, s{S_WG+j}, v{V_FIN+8*j+4*i+r}')
        a.e(f's_lshl_b32 s{S_T}, s{S_W}, 11')
        a.e(f'v_lshlrev_b32 v{V_T}, 4, v{V_LANE}')
        a.e(f'v_add_u32 v{V_T}, s{S_T}, v{V_T}')
        a.e(f'ds_write_b128 v{V_T}, {vr(V_D0)} offset:{L_Y}')
        a.e(f'ds_write_b128 v{V_T}, {vr(V_D1)} offset:{L_Y + 1024}')
        a.e('s_waitcnt lgkmcnt(0)\ns_barrier')
        a.e(f'v_lshlrev_b32 v{V_T}, 3, v{V_TID}')
        for w in range(4):
            a.e(f'ds_read_b64 {vr(V_QF+2*w, 2)}, v{V_T} offset:{L_Y + w*2048}')
        a.e(f's_mul_i32 s{S_T}, s{S_B}, 896')
        a.e(f'v_lshlrev_b32 v{V_T1}, 2, v{V_TID}')
        a.e(f'v_add_u32 v{V_T1}, s{S_T}, v{V_T1}')
        a.e(f'v_cmp_gt_u32 vcc, 224, v{V_TID}')
        a.e('s_waitcnt lgkmcnt(0)')
        for r in range(2):
            a.e(f'v_add_f32 v{V_QF+r}, v{V_QF+r}, v{V_QF+2+r}')
            a.e(f'v_add_f32 v{V_QF+4+r}, v{V_QF+4+r}, v{V_QF+6+r}')
            a.e(f'v_add_f32 v{V_QF+r}, v{V_QF+r}, v{V_QF+4+r}')
        a.e(f'v_cvt_pk_bf16_f32 v{V_QF}, v{V_QF}, v{V_QF+1}')
        a.e(f's_and_saveexec_b64 s[{S_EX}:{S_EX+1}], vcc')
        a.e('s_cbranch_execz L_fin_restore')
        a.e(f'buffer_store_dword v{V_QF}, v{V_T1}, {sr(R_OUT)}, 0 offen')
        a.label('L_fin_restore')
        a.e(f's_mov_b64 exec, s[{S_EX}:{S_EX+1}]')
        a.label('L_fin_skip')
        if self.stamps:
            self.stamp()
            a.e('s_waitcnt vmcnt(0) lgkmcnt(0)')
            a.e(f's_lshl_b32 s{S_T}, s2, 2')
            a.e(f's_add_u32 s{S_T}, s{S_T}, s{S_W}')
            a.e(f's_lshl_b32 s{S_T}, s{S_T}, 7')
            a.e(f's_add_u32 s{S_T}, s{S_T}, {WS_TS}')
            a.e(f'v_mov_b32 v{V_T1}, s{S_T}')
            a.e('s_mov_b64 exec, 1')
            for i in range(0, self.nstamp, 2):
                for k in range(4):
                    src = S_TS + 2*i + k
                    if i*2 + k < 2*self.nstamp:
                        a.e(f'v_mov_b32 v{V_QF+k}, s{src}')
                    else:
                        a.e(f'v_mov_b32 v{V_QF+k}, 0')
                a.e(f'buffer_store_dwordx4 {vr(V_QF)}, v{V_T1}, {sr(R_WS)}, 0 offen offset:{16*i//2*2//2*1 if False else 8*i}')
                a.e('s_nop 1')
            a.e('s_mov_b64 exec, -1')
            a.e(f's_lshl_b32 s{S_T}, s2, 2')
            a.e(f's_add_u32 s{S_T}, s{S_T}, s{S_W}')
            a.e(f's_lshl_b32 s{S_T}, s{S_T}, 8')
            a.e(f's_add_u32 s{S_T}, s{S_T}, {WS_TS + (1<<18)}')
            a.e(f'v_lshlrev_b32 v{V_T2}, 2, v{V_LANE}')
            a.e(f'v_add_u32 v{V_T2}, s{S_T}, v{V_T2}')
            a.e(f'buffer_store_dword v250, v{V_T2}, {sr(R_WS)}, 0 offen')
            a.e('s_mov_b64 exec, 1')
            a.e('s_getreg_b32 s98, hwreg(HW_REG_XCC_ID)')
            a.e('s_getreg_b32 s99, hwreg(HW_REG_HW_ID)')
            a.e(f'v_mov_b32 v{V_QF}, s98')
            a.e(f'v_mov_b32 v{V_QF+1}, s99')
            a.e(f'buffer_store_dwordx2 {vr(V_QF,2)}, v{V_T1}, {sr(R_WS)}, 0 offen offset:64')
            a.e('s_waitcnt vmcnt(0)')
        a.label('L_end')
        a.e('s_endpgm')

    def build(self):
        self.prologue()
        self.k_phase()
        self.midpoint()
        self.v_phase()
        self.tail()
        head = f'''; Kernarg layout (64 bytes, pointers only, base s[0:1]):
; @launch grid=(256,1,1) block=(256,1,1) lds={LDS_BYTES}
.amdgcn_target "amdgcn-amd-amdhsa--gfx950"
.text
.globl {KNAME}
.p2align 8
.type {KNAME},@function
{KNAME}:
'''
        tailtxt = f'''.section .rodata,"a"
.p2align 6
.amdhsa_kernel {KNAME}
  .amdhsa_next_free_vgpr 512
  .amdhsa_next_free_sgpr 102
  .amdhsa_accum_offset 256
  .amdhsa_group_segment_fixed_size 0
  .amdhsa_kernarg_size 64
  .amdhsa_user_sgpr_count 2
  .amdhsa_user_sgpr_kernarg_segment_ptr 1
  .amdhsa_system_sgpr_workgroup_id_x 1
.end_amdhsa_kernel
'''
        return head + self.a.text() + tailtxt

if __name__ == '__main__':
    ap = argparse.ArgumentParser()
    ap.add_argument('-o', default='/dev/stdout')
    ap.add_argument('--PD', type=float, default=5)
    ap.add_argument('--PDK', type=float, default=None)
    ap.add_argument('--PDK2', type=float, default=None)
    ap.add_argument('--PDV', type=float, default=None)
    ap.add_argument('--PDE', default='')
    ap.add_argument('--G', type=int, default=4)
    ap.add_argument('--LAG', type=int, default=14)
    ap.add_argument('--ninit', type=int, default=3)
    ap.add_argument('--stamps', action='store_true')
    ap.add_argument('--wflags', default='')
    ap.add_argument('--kvflags', default='nt')
    ap.add_argument('--dbg', default='')
    ap.add_argument('--ainit', type=int, default=0)
    ap.add_argument('--wpg', type=int, default=4)
    ap.add_argument('--kfirst', type=int, default=8)
    ap.add_argument('--kper', type=float, default=1.0)
    ap.add_argument('--wqflags', default=None)
    ap.add_argument('--kflags', default=None)
    ap.add_argument('--vflags', default=None)
    ap.add_argument('--map', type=int, default=0)
    ap.add_argument('--kat', default='')
    ap.add_argument('--kpost', type=int, default=0)
    ap.add_argument('--klast', type=int, default=0)
    ap.add_argument('--rot', type=int, default=0)
    x = ap.parse_args()
    k = Kernel(PD=x.PD, G=x.G, LAG=x.LAG, stamps=x.stamps, wflags=x.wflags, kvflags=x.kvflags, ninit=x.ninit, dbg=x.dbg, ainit=x.ainit, wpg=x.wpg, kfirst=x.kfirst, kper=x.kper, wqflags=x.wqflags, kflags=x.kflags, vflags=x.vflags, map=x.map, PDK=x.PDK, PDK2=x.PDK2, PDV=x.PDV, PDE=x.PDE, kat=x.kat, kpost=x.kpost, klast=x.klast, rot=x.rot)
    open(x.o, 'w').write(k.build())
```
